```python
import torch

def _softmax(x, axis=-1):
    return torch.softmax(x, dim=axis)
def _gelu(x):
    return torch.nn.functional.gelu(x, approximate="tanh")
def _silu(x):
    return torch.nn.functional.silu(x)
def _sigmoid(x):
    return torch.sigmoid(x)
def _layernorm(x, axis=-1, eps=1e-5):
    m = x.mean(dim=axis, keepdim=True)
    v = x.var(dim=axis, keepdim=True, unbiased=False)
    return (x - m) / torch.sqrt(v + eps)
def _scatter_add(tgt, idx, src, axis=0):
    return tgt.clone().index_add_(axis, idx, src)
def _segment_sum(src, seg, n):
    out = torch.zeros((n,) + src.shape[1:], dtype=src.dtype)
    return out.index_add_(0, seg, src)
def _pad(x, pw):
    flat = tuple(v for pair in reversed(pw) for v in pair)
    return torch.nn.functional.pad(x, flat)

kernel_name = 'parallel_sum__linear_kernel_hedgehog__dense_activation_mish__prompt'

def setup_inputs():

    _w = (lambda a: (lambda t: t.to(torch.bfloat16) if t.is_floating_point() else t)(torch.as_tensor(a)))
    def _A_setup():
        B, S, D, H = 1, 2048, 640, 32
        Dh = D // H
        return {
            "x": _w((lambda *s: torch.randn(*s, dtype=torch.bfloat16) * 0.05)(B, S, D)),
            "wqkv": _w((lambda *s: torch.randn(*s, dtype=torch.bfloat16) * 0.2)(D, 3 * D)),
            "w_phi": _w((lambda *s: torch.randn(*s, dtype=torch.bfloat16) * 0.2)(H, Dh, Dh) * (Dh ** -0.5)),
            "wo": _w((lambda *s: torch.randn(*s, dtype=torch.bfloat16) * 0.05)(D, D)),
        }
    _A_in = _A_setup()

    def _B_setup():
        B, S, D, F = 1, 2048, 640, 1728
        return {
            "x": _w((lambda *s: torch.randn(*s, dtype=torch.bfloat16) * 0.05)(B, S, D)),
            "w1": _w((lambda *s: torch.randn(*s, dtype=torch.bfloat16) * 0.8)(D, F) * (D ** -0.5)),
            "b1": _w((lambda *s: torch.randn(*s, dtype=torch.bfloat16) * 0.4)(F)),
            "w2": _w((lambda *s: torch.randn(*s, dtype=torch.bfloat16) * 0.1)(F, D) * (F ** -0.5)),
        }
    _B_in = _B_setup()

    return {
        "A_x": _A_in["x"],
        "A_wqkv": _A_in["wqkv"],
        "A_w_phi": _A_in["w_phi"],
        "A_wo": _A_in["wo"],
        "B_x": _B_in["x"],
        "B_w1": _B_in["w1"],
        "B_b1": _B_in["b1"],
        "B_w2": _B_in["w2"],
    }

def reference(A_x, A_wqkv, A_w_phi, A_wo, B_x, B_w1, B_b1, B_w2):
    def _A_ref(x, wqkv, w_phi, wo):
        B, S, D = x.shape
        H = 32; Dh = D // H
        qkv = (lambda x, *d: x.permute(*d))((x @ wqkv).reshape(B, S, 3, H, Dh), 2, 0, 3, 1, 4)
        q, k, v = qkv[0], qkv[1], qkv[2]
        pq = torch.einsum("bhsd,hdf->bhsf", q, w_phi)
        pk = torch.einsum("bhsd,hdf->bhsf", k, w_phi)
        phi_q = torch.concatenate([_softmax(pq, axis=-1), _softmax(-pq, axis=-1)], axis=-1)
        phi_k = torch.concatenate([_softmax(pk, axis=-1), _softmax(-pk, axis=-1)], axis=-1)
        kv = torch.einsum("bhsf,bhsd->bhfd", phi_k, v)
        z  = torch.einsum("bhsf->bhf", phi_k)
        num = torch.einsum("bhqf,bhfd->bhqd", phi_q, kv)
        den = torch.einsum("bhqf,bhf->bhq", phi_q, z)[..., None] + 1e-6
        o = num / den
        return (lambda x, *d: x.permute(*d))(o, 0, 2, 1, 3).reshape(B, S, D) @ wo

    def _B_ref(x, w1, b1, w2):
        h = torch.einsum("bsd,df->bsf", x, w1) + b1
        sp = torch.log1p(torch.exp(-torch.abs(h))) + torch.where(h > 0, h, torch.zeros_like(h))
        act = h * torch.tanh(sp)
        return torch.einsum("bsf,fd->bsd", act, w2)

    x = A_x
    xn = _layernorm(x, axis=-1)
    return x + _A_ref(xn, A_wqkv, A_w_phi, A_wo) + _B_ref(xn, B_w1, B_b1, B_w2)
```

```python
import re

TRANS = ("v_exp_f32", "v_log_f32", "v_rcp_f32", "v_rsq_f32", "v_sqrt_f32", "v_sin_f32", "v_cos_f32", "v_rcp_iflag_f32")
REG = re.compile(r"^(-|\|)?(abs\()?([vas])(\d+|\[(\d+):(\d+)\])\)?\|?$")


def regs_of(tok):
    tok = tok.strip()
    if tok in ("vcc", "exec"):
        return {(tok, 0), (tok, 1)}
    if tok in ("vcc_lo", "exec_lo"):
        return {(tok[:-3], 0)}
    if tok in ("vcc_hi", "exec_hi"):
        return {(tok[:-3], 1)}
    if tok == "m0":
        return {("m0", 0)}
    m = REG.match(tok)
    if not m:
        return set()
    f = m.group(3)
    if m.group(5) is not None:
        return {(f, i) for i in range(int(m.group(5)), int(m.group(6)) + 1)}
    return {(f, int(m.group(4)))}


class Inst:
    __slots__ = ("text", "op", "reads", "writes", "kind", "cost", "srcc", "passes", "dpp", "wide_store", "on", "tag", "sdata")

    def __init__(self, text, kind=None, on=None, tag=None):
        self.text = text
        self.on = on
        self.tag = tag
        self.reads = set()
        self.writes = set()
        self.srcc = set()
        self.sdata = set()
        self.passes = 0
        self.dpp = False
        self.wide_store = False
        self.cost = 4
        if kind is not None:
            self.kind = kind
            self.op = kind
            self.cost = 0
            return
        parts = text.split(None, 1)
        op = parts[0]
        self.op = op
        rest = parts[1] if len(parts) > 1 else ""
        ops = []
        depth = 0
        cur = ""
        for ch in rest:
            if ch == "[":
                depth += 1
            if ch == "]":
                depth -= 1
            if ch == "," and depth == 0:
                ops.append(cur.strip())
                cur = ""
            else:
                cur += ch
        if cur.strip():
            ops.append(cur.strip())
        mods = ""
        if ops:
            last = ops[-1].split(None, 1)
            ops[-1] = last[0]
            mods = last[1] if len(last) > 1 else ""
        R = [regs_of(o) for o in ops]
        allr = lambda lst: set().union(*lst) if lst else set()
        if op.startswith("v_mfma"):
            self.kind = "mfma"
            self.writes = R[0]
            self.reads = R[1] | R[2] | R[3]
            self.srcc = R[3]
            self.passes = 8 if "32x32" in op else 4
            self.cost = 8
        elif op.startswith("v_"):
            self.kind = "valu"
            if any(op.startswith(t) for t in TRANS):
                self.kind = "trans"
                self.cost = 8
            if op.startswith("v_dot2"):
                self.kind = "dot"
            if op.startswith("v_permlane") and "swap" in op:
                self.writes = R[0] | R[1]
                self.reads = R[0] | R[1]
            elif op.startswith("v_add_co") or op.startswith("v_sub_co") or op.startswith("v_addc_co"):
                self.writes = R[0] | R[1]
                self.reads = allr(R[2:])
            else:
                self.writes = R[0]
                self.reads = allr(R[1:])
                if op.startswith("v_fmac") or op.startswith("v_dot2c") or op.startswith("v_writelane"):
                    self.reads |= R[0]
            if "quad_perm" in mods or "row_" in mods or "wave_" in mods:
                self.dpp = True
                self.reads |= R[0]
            if op.startswith("v_cmpx"):
                raise ValueError("avoid v_cmpx")
        elif op.startswith("ds_"):
            self.kind = "ds"
            if op.startswith("ds_read") or op.startswith("ds_bpermute") or op.startswith("ds_swizzle"):
                self.writes = R[0]
                self.reads = allr(R[1:])
            else:
                self.reads = allr(R)
        elif op.startswith("buffer_") or op.startswith("global_"):
            self.kind = "vm"
            words = mods.split()
            if op.startswith("buffer_load"):
                if "lds" in words:
                    self.reads = allr(R) | {("m0", 0)}
                    self.kind = "vm"
                    self.tag = self.tag or "dma"
                else:
                    self.writes = R[0]
                    self.reads = allr(R[1:])
            elif op.startswith("buffer_store"):
                self.reads = allr(R)
                self.sdata = R[0]
                self.wide_store = op.endswith("x4") or op.endswith("x3")
            else:
                raise ValueError("unsupported vm op " + op)
        elif op.startswith("s_load") or op.startswith("s_memrealtime") or op.startswith("s_memtime"):
            self.kind = "smem"
            self.writes = R[0]
            self.reads = allr(R[1:])
        elif op.startswith("s_"):
            self.kind = "salu"
            if op in ("s_waitcnt", "s_barrier", "s_nop", "s_endpgm", "s_setprio", "s_sleep", "s_branch") or op.startswith("s_cbranch"):
                if op == "s_cbranch_vccz" or op == "s_cbranch_vccnz":
                    self.reads = {("vcc", 0), ("vcc", 1)}
            elif op.startswith("s_cmp") or op.startswith("s_bitcmp"):
                self.reads = allr(R)
            else:
                self.writes = R[0]
                self.reads = allr(R[1:])
                if "saveexec" in op:
                    self.writes |= {("exec", 0), ("exec", 1)}
                if op in ("s_addk_i32", "s_mulk_i32"):
                    self.reads |= R[0]
        else:
            raise ValueError("unknown op " + text)

    def __repr__(self):
        return self.text


def I(text, tag=None):
    return Inst(text, tag=tag)


def L(txt):
    out = []
    for ln in txt.strip().split("\n"):
        ln = ln.split(";")[0].strip()
        if ln:
            m = re.match(r"s_cselect_b32 (\S+), (0x[0-9a-f]+|\d+), (0x[0-9a-f]+|\d+)$", ln)
            if m and int(m.group(2), 0) > 64 and int(m.group(3), 0) > 64 and m.group(3) != "0xbf800000":
                out.append(Inst(f"s_mov_b32 {m.group(1)}, {m.group(3)}"))
                ln = f"s_cselect_b32 {m.group(1)}, {m.group(2)}, {m.group(1)}"
            out.append(Inst(ln))
    return out


def WaitVM(on):
    if isinstance(on, Inst):
        on = [on]
    return Inst("<waitvm>", kind="waitvm", on=list(on))


def WaitLG(on):
    if isinstance(on, Inst):
        on = [on]
    return Inst("<waitlg>", kind="waitlg", on=list(on))


def Label(name):
    return Inst(name + ":", kind="label")


def Raw(text):
    return Inst(text, kind="raw")


def Comment(text):
    return Inst("; " + text, kind="comment")


class State:
    def __init__(self):
        self.vm = []
        self.lg = []
        self.hist = []

    def copy(self):
        s = State()
        s.vm = list(self.vm)
        s.lg = list(self.lg)
        s.hist = list(self.hist)
        return s


def is_valu(i):
    return i.kind in ("valu", "trans", "dot")


def vregs(s):
    return {r for r in s if r[0] in ("v", "a")}


def sregs(s):
    return {r for r in s if r[0] in ("s", "vcc")}


def need_states(p, c):
    n = 0
    cr, cw = c.reads, c.writes
    if p.kind == "mfma":
        D = p.writes
        big = 12 if p.passes == 8 else 8
        if c.kind == "mfma":
            if D & (c.reads - c.srcc) or (D & c.srcc and D & (c.reads - c.srcc)):
                n = max(n, big)
            ab = c.reads - c.srcc
            if D & ab:
                n = max(n, big)
            if D & c.srcc:
                if not (c.srcc == D and c.passes == p.passes):
                    n = max(n, big - 2)
            elif D & c.writes:
                n = max(n, big)
        elif is_valu(c) or c.kind in ("ds", "vm"):
            if D & (cr | cw):
                n = max(n, big)
        if is_valu(c) and p.srcc & cw:
            n = max(n, 7 if p.passes == 8 else 3)
    elif is_valu(p):
        pv = vregs(p.writes)
        ps = sregs(p.writes)
        if c.kind == "mfma" and pv & cr:
            n = max(n, 2)
        if p.kind == "trans" and is_valu(c) and c.kind != "trans" and pv & cr:
            n = max(n, 1)
        if p.kind == "trans" and c.kind in ("ds", "vm") and pv & cr:
            n = max(n, 1)
        if p.kind == "dot":
            if is_valu(c) or c.kind in ("mfma", "ds", "vm"):
                if pv & (cr | cw):
                    same = c.kind == "dot" and c.op == p.op
                    if same:
                        toks = c.text.split(None, 1)[1].split(",")
                        ab = regs_of(toks[1].strip()) | regs_of(toks[2].strip())
                        if pv & ab:
                            n = max(n, 3)
                    else:
                        n = max(n, 3)
        if is_valu(c):
            if ps & cr:
                n = max(n, 2)
                if c.op.startswith("v_readlane") or c.op.startswith("v_writelane"):
                    n = max(n, 4)
            if c.dpp and pv & cr:
                n = max(n, 2)
            if c.op.startswith("v_permlane") and pv & cr:
                n = max(n, 2)
            if (c.op.startswith("v_readfirstlane") or c.op.startswith("v_readlane")) and pv & cr:
                n = max(n, 1)
        if c.kind == "vm" and ps & cr:
            n = max(n, 5)
        if c.kind == "salu" and ps & cr:
            n = max(n, 4)
            if c.op.startswith("s_cbranch_vcc"):
                n = max(n, 5)
    elif p.kind == "salu":
        if ("m0", 0) in p.writes and c.kind == "vm" and ("m0", 0) in cr:
            n = max(n, 1)
        if ("exec", 0) in p.writes and (c.dpp or c.kind == "mfma"):
            n = max(n, 4)
    elif p.kind == "vm":
        if p.wide_store and p.sdata & cw:
            n = max(n, 2)
    return n


class Out:
    def __init__(self):
        self.lines = []
        self.nops = 0
        self.waits = 0
        self.count = 0
        self.done = set()

    def emit(self, seq, st):
        for ins in seq:
            k = ins.kind
            if k in ("label", "comment"):
                self.lines.append(ins.text)
                continue
            if k == "raw":
                self.lines.append("    s_nop 7")
                self.lines.append(ins.text)
                self.lines.append("    s_nop 7")
                st.hist = []
                continue
            nv = None
            nl = None
            if k in ("waitvm", "waitlg"):
                for o in ins.on:
                    assert o in self.done or o.kind.startswith("join") or o.kind == "smem", f"wait on instruction not yet emitted: {o}"
            else:
                assert ins not in self.done or ins.kind == "mfma", f"emitted twice: {ins}"
                self.done.add(ins)
            if k == "waitvm":
                idx = max([st.vm.index(o) for o in ins.on if o in st.vm], default=-1)
                if idx >= 0:
                    nv = len(st.vm) - 1 - idx
            elif k == "waitlg":
                idx = max([st.lg.index(o) for o in ins.on if o in st.lg], default=-1)
                if idx >= 0:
                    nl = len(st.lg) - 1 - idx
            else:
                touch = ins.reads | ins.writes
                for j in range(len(st.vm) - 1, -1, -1):
                    if st.vm[j].writes & touch:
                        nv = len(st.vm) - 1 - j
                        break
                for j in range(len(st.lg) - 1, -1, -1):
                    if st.lg[j].writes & touch:
                        nl = len(st.lg) - 1 - j
                        break
            if nl is not None and any(o.kind == "smem" for o in st.lg):
                nl = 0
            if nv is not None or nl is not None:
                t = "s_waitcnt"
                if nv is not None:
                    nv = min(nv, 63)
                    t += f" vmcnt({nv})"
                    st.vm = st.vm[len(st.vm) - nv:] if nv else []
                if nl is not None:
                    nl = min(nl, 15)
                    t += f" lgkmcnt({nl})"
                    st.lg = st.lg[len(st.lg) - nl:] if nl else []
                self.lines.append("    " + t)
                self.waits += 1
                self.count += 1
                st.hist.append((Inst(t), 1))
            if k in ("waitvm", "waitlg"):
                continue
            dist = 0
            pad = 0
            for p, w in reversed(st.hist):
                req = need_states(p, ins)
                if req > dist:
                    pad = max(pad, req - dist)
                dist += w
                if dist >= 12:
                    break
            while pad > 0:
                n = min(pad, 16)
                self.lines.append(f"    s_nop {n - 1}")
                st.hist.append((Inst("s_nop 0"), n))
                self.nops += 1
                self.count += 1
                pad -= n
            self.lines.append("    " + ins.text)
            self.count += 1
            w = 1
            if ins.op == "s_nop":
                w = int(ins.text.split()[1]) + 1
            st.hist.append((ins, w))
            if len(st.hist) > 24:
                st.hist = st.hist[-16:]
            if ins.op == "s_waitcnt":
                m = re.search(r"vmcnt\((\d+)\)", ins.text)
                if m:
                    n = int(m.group(1))
                    st.vm = st.vm[len(st.vm) - n:] if n and n < len(st.vm) else (st.vm if n else [])
                m = re.search(r"lgkmcnt\((\d+)\)", ins.text)
                if m:
                    n = int(m.group(1))
                    st.lg = st.lg[len(st.lg) - n:] if n and n < len(st.lg) else (st.lg if n else [])
            if k == "vm":
                st.vm.append(ins)
            elif k in ("ds", "smem"):
                st.lg.append(ins)
        return st

    def text(self):
        return "\n".join(self.lines) + "\n"


def join_states(states):
    s = State()
    pv = Inst("<joinvm>", kind="joinvm")
    pl = Inst("<joinlg>", kind="joinlg")
    for t in states:
        for o in t.vm:
            pv.writes |= o.writes
        for o in t.lg:
            pl.writes |= o.writes
            if o.kind == "smem":
                pl.kind = "smem"
    s.vm = [pv]
    s.lg = [pl]
    return s, pv


def merge(main, side, budget=24, start=0, maxside=None):
    out = []
    si = 0
    debt = 0
    for gi, g in enumerate(main):
        out.extend(g)
        if gi < start:
            continue
        used = sum(i.cost for i in g if i.kind != "mfma")
        room = budget - used - debt
        debt = 0
        while si < len(side):
            c = side[si].cost
            if c > room and not (c == 0):
                if room >= c / 2 and c > 0:
                    debt = c - room
                    out.append(side[si])
                    si += 1
                break
            out.append(side[si])
            room -= c
            si += 1
    return out, side[si:]
```

```python
import sys, os
sys.path.insert(0, os.path.dirname(os.path.abspath(__file__)))
from asm import *

NAME = "parallel_sum__linear_kernel_hedgehog__dense_activation_mish__prompt"
OPT = dict(stamps=False, spin=20000)
for a in sys.argv[2:]:
    k, v = a.split("=")
    OPT[k] = int(v)

WS_FLAGS = 0x10000
WS_STATS = 0x40000
WS_COLS = 0x50000
WS_KVP = 0x100000
WS_W2F = 0x200000
WS_ACT = 0x500000
WS_DBG = 0x1100000
WS_SIZE = 0x1200000
RT = 96 * 1024
F_PREP, F_W2, F_ACT, F_Q, F_KV, F_O = 0, 256, 384, 896, 1152, 1280
OOB = 0x80000000
LOG2E = 0x3FB8AA3B
LN2 = 0x3F317218
LDS_SIZE = 163840
L_CB_M = 131072
L_KR = 65536
L_CB_KV = L_KR + 3 * 20480
L_EX = 81920
L_WPH = 151552
L_OW = 155648
L_ZERO = 156672
L_AUG = 159744
SX, SWQ, SW1, SWS, SOUT, SU1, SU3, SB1, SPH, SR = ["s[%d:%d]" % (i, i + 3) for i in range(28, 68, 4)]
sWV, sRB, sG, sLQ, sNON, sT0, sT1, sT2, sT3, sK1, sU1CS, sU1B, sU0B, sU2B, sU3B = ["s%d" % i for i in range(68, 83)]
sKS0, sKS1, sKS2, sKS3, sFL0, sFL1, sFL2, sFL3, sMI, sONE, sHH, sRC, sR2, sCG, sSPIN, sFLL = ["s%d" % i for i in range(83, 99)]
sX, sY = "s26", "s27"
sM0, sM1, sM2 = "s[8:9]", "s[12:13]", "s[14:15]"
vLANE = "v1"
vXD = [2, 3, 4, 5]
vXR = [[6, 7, 8, 9], [10, 11, 12, 13]]
vW1 = [14, 15, 16, 17]
vWQ = [18, 19, 20, 21]
vU1 = [22, 23, 24, 25]
vKD = [18, 19, 20, 21, 22]
vTA = [[26, 27], [28, 29]]
vAUG, vST, vFL, vC, vRSTD, vF = 30, 31, 32, 33, 34, 35
vBAUG = 36
RING = [40, 44, 48, 52]
vNON, vPA, vW2A, vW2B = 56, 57, 58, 59
ACC = [60, 76, 92]
TMP = 108
KA, PK = 128, 208
vKT = [[60, 61, 62, 63, 64], [65, 66, 67, 68, 69]]
vKAUG = [70, 71, 72, 73, 74]
aWPH = 160

HEADS = [[0, 2], [1, 3]]


def piece_tables():
    k = lambda h, s: 5 * h + s
    v = lambda h, s: 20 + 5 * h + s
    def pick(lst, residues):
        out = []
        for r in residues:
            c = [p for p in lst if p % 8 == r][0]
            lst.remove(c)
            out.append(c)
        return out
    k0 = [k(0, s) for s in range(5)]; k1 = [k(1, s) for s in range(5)]
    k2 = [k(2, s) for s in range(5)]; k3 = [k(3, s) for s in range(5)]
    va = [v(0, s) for s in range(5)] + [v(2, s) for s in range(5)]
    vb = [v(1, s) for s in range(5)] + [v(3, s) for s in range(5)]
    h0 = pick(k0, [1, 2, 3, 4]) + pick(k0, [0]) + pick(k2, [4, 5, 6]) + pick(k2, [2, 3]) + pick(va, [6, 7]) + pick(va, [0, 1, 2, 4]) + pick(va, [5, 0, 6, 7])
    h1 = pick(k1, [5, 6, 7, 0]) + pick(k1, [1]) + pick(k3, [7, 2, 3]) + pick(k3, [0, 1]) + pick(vb, [4, 5]) + pick(vb, [3, 5, 6, 7]) + pick(vb, [1, 2, 3, 4])
    for t in range(5):
        assert len({p % 8 for p in h0[4 * t:4 * t + 4] + h1[4 * t:4 * t + 4]}) == 8
    return [h0, h1]


P = piece_tables()

slow_paths = []
_uid = [0]


def uid():
    _uid[0] += 1
    return _uid[0]


def vr(a, n=1):
    return f"v{a}" if n == 1 else f"v[{a}:{a + n - 1}]"


def ar(a, n=1):
    return f"a{a}" if n == 1 else f"a[{a}:{a + n - 1}]"


nstamp = [0]


def stamp(i):
    if not OPT["stamps"]:
        return []
    return [I(f"s_memrealtime s[100:101]"), I("s_waitcnt lgkmcnt(0)"), I(f"v_accvgpr_write_b32 a{240 + i}, s100")]


def lit(s, val):
    return I(f"s_mov_b32 {s}, 0x{val & 0xffffffff:x}")


def poll_issue(addr=vPA, dst=vF):
    return [I(f"buffer_load_dword {vr(dst)}, {vr(addr)}, {SWS}, 0 offen sc1")]


def poll_check(addr=vPA, dst=vF):
    n = uid()
    slow_paths.append(f"""Lslow{n}:
    s_mov_b32 {sSPIN}, 0
Lspin{n}:
    s_add_u32 {sSPIN}, {sSPIN}, 1
    s_cmp_gt_u32 {sSPIN}, {OPT['spin']}
    s_cbranch_scc1 Lout{n}
    buffer_load_dword {vr(dst)}, {vr(addr)}, {SWS}, 0 offen sc1
    s_waitcnt vmcnt(0)
    v_cmp_ne_u32 vcc, {sNON}, {vr(dst)}
    s_nop 4
    s_cbranch_vccnz Lspin{n}
Lout{n}:
    s_nop 7
    s_branch Lback{n}""")
    return [I(f"v_cmp_ne_u32 vcc, {sNON}, {vr(dst)}")], [I(f"s_cbranch_vccnz Lslow{n}"), Label(f"Lback{n}")]


def publish(soff, non=vNON, fl=vFL):
    return [I(f"buffer_store_dword {vr(non)}, {vr(fl)}, {SWS}, {soff} offen sc1")]


def dma4(srd, voffs, soff, ldsbase):
    out = [I(f"s_add_u32 m0, {sLQ}, 0x{ldsbase:x}")]
    for n in range(4):
        out.append(I(f"buffer_load_dwordx4 {vr(voffs[n])}, {srd}, {soff} offen" + (f" offset:{n * 1024}" if n else "") + " lds"))
    return out


def vmops(lst):
    return [i for i in lst if i.kind == "vm"]


def entry():
    s = L(f"""
    s_cmp_ge_u32 s2, 256
    s_cbranch_scc1 Lend
    s_load_dwordx16 s[4:19], s[0:1], 0
    s_load_dwordx4 s[20:23], s[0:1], 64
    s_load_dwordx2 s[24:25], s[0:1], 80
    v_lshrrev_b32 v2, 6, v0
    v_and_b32 {vLANE}, 63, v0
    v_readfirstlane_b32 {sWV}, v2
    s_and_b32 {sX}, s2, 7
    s_lshr_b32 {sY}, s2, 3
    s_and_b32 {sT0}, {sX}, 1
    s_lshl_b32 {sT0}, {sT0}, 3
    s_and_b32 {sT1}, {sY}, 7
    s_add_u32 {sRB}, {sT0}, {sT1}
    s_and_b32 {sT0}, {sX}, 6
    s_bfe_u32 {sT1}, {sY}, 0x10003
    s_add_u32 {sG}, {sT0}, {sT1}
    s_lshl_b32 {sLQ}, {sWV}, 12
    s_mov_b32 {sONE}, 0x3f803f80
    s_lshl_b32 {sT0}, {sX}, 2
    s_and_b32 {sT1}, {sY}, 3
    s_add_u32 {sHH}, {sT0}, {sT1}
    s_lshr_b32 {sRC}, {sY}, 2
    s_and_b32 {sT0}, {sX}, 6
    s_lshl_b32 {sT0}, {sT0}, 2
    s_and_b32 {sT1}, {sY}, 7
    s_add_u32 {sR2}, {sT0}, {sT1}
    s_and_b32 {sT0}, {sX}, 1
    s_lshl_b32 {sT0}, {sT0}, 2
    s_lshr_b32 {sT1}, {sY}, 3
    s_add_u32 {sCG}, {sT0}, {sT1}
    """)
    if OPT["stamps"]:
        s += [I(f"v_accvgpr_write_b32 a{240 + i}, 0") for i in range(16)] + stamp(0)
    s += [I("s_waitcnt lgkmcnt(0)")]
    def srd(name, lo, size):
        b = int(name[2:name.index(":")])
        return L(f"""
        s_mov_b32 s{b}, s{lo}
        s_and_b32 s{b + 1}, s{lo + 1}, 0xffff
        s_mov_b32 s{b + 2}, 0x{size:x}
        s_mov_b32 s{b + 3}, 0x20000""")
    s += srd(SWS, 24, WS_SIZE) + srd(SX, 4, 2621440)
    s += L(f"""
    v_mov_b32 v128, 0
    v_lshrrev_b32 v129, 5, v0
    s_lshl_b32 {sT0}, s2, 3
    v_add_u32 v129, {sT0}, v129
    v_mul_u32_u24 v130, 1280, v129
    v_and_b32 v131, 31, v0
    v_lshl_add_u32 v130, v131, 4, v130
    buffer_load_dword v128, v128, {SWS}, 0 offen sc1
    v_cmp_gt_u32 vcc, 16, v131
    v_mov_b32 v132, 0x{OOB:x}
    buffer_load_dwordx4 v[136:139], v130, {SX}, 0 offen
    buffer_load_dwordx4 v[140:143], v130, {SX}, 0 offen offset:512
    v_cndmask_b32 v132, v132, v130, vcc
    buffer_load_dwordx4 v[144:147], v132, {SX}, 0 offen offset:1024
    """)
    s += srd(SWQ, 6, 2457600) + srd(SW1, 14, 2211840)
    b = int(SR[2:SR.index(":")])
    s += L(f"""
    s_lshr_b32 {sT0}, s2, 2
    s_cmp_lt_u32 {sT0}, 30
    s_cselect_b32 s{b}, s6, s14
    s_cselect_b32 s{b + 1}, s7, s15
    s_cselect_b32 s{b + 2}, 2457600, 2211840
    s_cselect_b32 {sT1}, 3840, 3456
    s_cselect_b32 {sT2}, 0, 30
    s_and_b32 s{b + 1}, s{b + 1}, 0xffff
    s_mov_b32 s{b + 3}, 0x20000
    s_sub_u32 {sT2}, {sT0}, {sT2}
    s_lshl_b32 {sT2}, {sT2}, 7
    s_cmp_lt_u32 s2, 228
    s_cselect_b32 s{b + 2}, s{b + 2}, 0
    s_and_b32 {sT3}, s2, 3
    s_mul_i32 {sT3}, {sT3}, 160
    s_mul_i32 {sK1}, {sWV}, 40
    s_add_u32 {sT3}, {sT3}, {sK1}
    v_lshrrev_b32 v133, 3, {vLANE}
    v_bfe_u32 v134, {vLANE}, 4, 1
    v_lshlrev_b32 v134, 2, v134
    v_and_b32 v135, 7, {vLANE}
    v_xor_b32 v134, v134, v135
    v_lshlrev_b32 v134, 4, v134
    v_add_u32 v135, {sT3}, v133
    v_mul_lo_u32 v135, v135, {sT1}
    v_add_u32 v135, v135, v134
    s_lshl_b32 {sT1}, {sT1}, 3
    s_mul_i32 {sT3}, {sWV}, 5120
    s_cmp_lt_u32 {sY}, 16
    s_cselect_b32 {sK1}, 0x{L_CB_KV:x}, 0x{L_CB_M:x}
    s_add_u32 {sT3}, {sT3}, {sK1}
    s_mov_b32 {sMI}, {sK1}
    """)
    cdma = []
    for n in range(5):
        s.append(I(f"s_add_u32 m0, {sT3}, {n * 1024}"))
        if n:
            s.append(I(f"s_add_u32 {sT2}, {sT2}, {sT1}"))
        d = I(f"buffer_load_dwordx4 v135, {SR}, {sT2} offen lds")
        cdma.append(d)
        s.append(d)
    s += L(f"""
    s_lshl_b32 {sT0}, {sRB}, 7
    s_lshl_b32 {sT1}, {sWV}, 5
    s_add_u32 {sT0}, {sT0}, {sT1}
    v_add_u32 v148, {sT0}, v133
    v_mul_u32_u24 v148, 1280, v148
    v_lshrrev_b32 v149, 4, {vLANE}
    v_and_b32 v150, 7, {vLANE}
    v_xor_b32 v149, v149, v150
    v_xor_b32 v150, 4, v149
    v_lshl_add_u32 {vr(vXD[0])}, v149, 4, v148
    v_lshl_add_u32 {vr(vXD[1])}, v150, 4, v148
    v_add_u32 {vr(vXD[2])}, {2 * (8 * 1280 - 1024)}, {vr(vXD[0])}
    v_add_u32 {vr(vXD[3])}, {3 * (8 * 1280 - 1024)}, {vr(vXD[1])}
    v_add_u32 {vr(vXD[1])}, {1 * (8 * 1280 - 1024)}, {vr(vXD[1])}
    """)
    return s, cdma


def xs_load(stage, ldsbase):
    return [lit(sT0, stage * 128)] + dma4(SX, vXD, sT0, ldsbase)


def w_offsets(dst, stride):
    s = L(f"""
    s_lshl_b32 {sT0}, {sWV}, 5
    v_add_u32 v151, {sT0}, v133""")
    if isinstance(stride, int):
        s += L(f"""
        v_mul_u32_u24 v151, {stride}, v151
        v_add_u32 {vr(dst[0])}, v151, v134""")
        for n in range(1, 4):
            s.append(I(f"v_add_u32 {vr(dst[n])}, {n * (8 * stride - 1024)}, {vr(dst[0])}"))
    else:
        s += L(f"""
        v_mul_lo_u32 v151, v151, {stride}
        s_lshl_b32 {sT0}, {stride}, 3
        s_sub_u32 {sT0}, {sT0}, 1024
        v_add_u32 {vr(dst[0])}, v151, v134""")
        for n in range(1, 4):
            s.append(I(f"v_add_u32 {vr(dst[n])}, {sT0}, {vr(dst[n - 1])}"))
    return s


def common_setup():
    def srd(name, lo, size):
        b = int(name[2:name.index(":")])
        return L(f"""
        s_mov_b32 s{b}, s{lo}
        s_and_b32 s{b + 1}, s{lo + 1}, 0xffff
        s_mov_b32 s{b + 2}, 0x{size:x}
        s_mov_b32 s{b + 3}, 0x20000""")
    s = srd(SOUT, 20, 2621440) + srd(SB1, 16, 3456) + srd(SPH, 8, 25600)
    s += w_offsets(vW1, 3456)
    s += L(f"""
    v_and_b32 v148, 31, {vLANE}
    v_bfe_u32 v149, {vLANE}, 1, 3
    v_lshrrev_b32 v150, 5, {vLANE}
    v_xor_b32 v149, v149, v150
    v_lshlrev_b32 v151, 7, v148
    v_add_u32 v151, {sLQ}, v151
    """)
    for k in range(4):
        s += L(f"""
        v_xor_b32 v152, {2 * k}, v149
        v_lshl_add_u32 {vr(vXR[0][k])}, v152, 4, v151
        v_add_u32 {vr(vXR[1][k])}, 0x10000, {vr(vXR[0][k])}""")
    s += L(f"""
    v_bfe_u32 v152, {vLANE}, 4, 1
    v_bfe_u32 v153, {vLANE}, 1, 1
    v_lshl_add_u32 v152, v152, 1, v153       ; q = 2gi + (c>>1)
    v_and_b32 v153, 1, {vLANE}               ; h'
    v_lshrrev_b32 v154, 1, v152              ; q>>1
    v_lshl_add_u32 v154, v153, 1, v154       ; col4>>1 = 2h' + (q>>1)
    v_bfe_u32 v155, {vLANE}, 3, 1            ; (r>>1)&1
    v_lshlrev_b32 v155, 2, v155
    v_xor_b32 v154, v154, v155
    v_and_b32 v152, 1, v152                  ; col4&1 = q&1
    v_lshlrev_b32 v152, 3, v152
    v_bfe_u32 v155, {vLANE}, 2, 2            ; r
    v_lshl_add_u32 v155, v150, 3, v155       ; k = 8hk + r
    v_lshl_add_u32 v152, v155, 7, v152
    v_lshl_add_u32 {vr(vTA[0][0])}, v154, 4, v152
    v_xor_b32 {vr(vTA[1][0])}, 64, {vr(vTA[0][0])}
    v_add_u32 {vr(vTA[0][1])}, 0x10000, {vr(vTA[0][0])}
    v_add_u32 {vr(vTA[1][1])}, 0x10000, {vr(vTA[1][0])}
    """)
    s += L(f"""
    v_bfe_u32 v152, {vLANE}, 2, 1
    v_bfe_u32 v153, {vLANE}, 3, 2
    v_and_b32 v154, 3, {vLANE}
    v_lshl_add_u32 v154, v153, 2, v154
    v_lshl_add_u32 v154, v152, 4, v154
    v_lshlrev_b32 v154, 4, v154
    v_add_u32 {vr(vAUG)}, 0x{L_AUG:x}, v154
    """)
    s += L(f"""
    s_lshl_b32 {sT0}, {sRB}, 3
    s_lshl_b32 {sT1}, {sWV}, 1
    s_add_u32 {sT0}, {sT0}, {sT1}
    v_bfe_u32 v152, {vLANE}, 4, 1
    v_add_u32 v152, {sT0}, v152
    s_mov_b32 {sT0}, {RT}
    v_mul_lo_u32 v152, v152, {sT0}
    v_and_b32 v153, 15, {vLANE}
    v_lshlrev_b32 v153, 4, v153
    v_lshl_add_u32 v153, v150, 9, v153
    v_add_u32 v152, v152, v153
    v_add_u32 {vr(vST)}, 0x{WS_ACT:x}, v152
    v_cmp_eq_u32 vcc, 0, v0
    v_mov_b32 v152, 0x{OOB:x}
    v_cndmask_b32 {vr(vFL)}, v152, 0, vcc
    """)
    s += L(f"""
    s_mul_i32 {sT0}, {sCG}, {76 * 5120}
    s_mul_i32 {sT1}, {sWV}, 5120
    s_add_u32 {sT0}, {sT0}, {sT1}
    s_add_u32 {sT0}, {sT0}, 0x{WS_W2F:x}
    v_lshlrev_b32 v152, 4, {vLANE}
    v_add_u32 {vr(vW2A)}, {sT0}, v152
    v_add_u32 {vr(vW2B)}, 4096, {vr(vW2A)}
    """)
    return s


def small_dmas():
    s = L(f"""
    s_mul_i32 {sT0}, {sHH}, 800
    v_subrev_u32 v152, 10, {vLANE}
    v_cmp_gt_u32 vcc, 50, v152
    v_lshlrev_b32 v152, 4, v152
    v_mov_b32 v153, 0x{OOB:x}
    s_mov_b32 m0, 0x{L_OW:x}
    v_cndmask_b32 v152, v153, v152, vcc
    buffer_load_dwordx4 v152, {SPH}, {sT0} offen lds
    s_mov_b32 m0, 0x{L_ZERO:x}
    s_nop 0
    buffer_load_dwordx4 v153, {SPH}, 0 offen lds
    """)
    return s


def stats_compute():
    s = L(f"""
    v_mov_b32 v156, 0
    v_mov_b32 v157, 0
    """)
    for i in range(12):
        s.append(I(f"v_dot2_f32_bf16 v156, v{136 + i}, {sONE}, v156"))
        s.append(I(f"v_dot2_f32_bf16 v157, v{136 + i}, v{136 + i}, v157"))
    s += L(f"""
    v_readfirstlane_b32 {sNON}, v128
    s_add_u32 {sNON}, {sNON}, 0x9e3779b1
    v_mov_b32 {vr(vNON)}, {sNON}
    """)
    for m in ("quad_perm:[1,0,3,2]", "quad_perm:[2,3,0,1]", "row_half_mirror", "row_mirror"):
        s.append(I(f"v_add_f32_dpp v156, v156, v156 {m} row_mask:0xf bank_mask:0xf"))
        s.append(I(f"v_add_f32_dpp v157, v157, v157 {m} row_mask:0xf bank_mask:0xf"))
    s += L(f"""
    v_mov_b32 v158, v156
    v_mov_b32 v159, v157
    v_permlane16_swap_b32 v156, v158
    v_permlane16_swap_b32 v157, v159
    v_add_f32 v156, v156, v158
    v_add_f32 v157, v157, v159
    v_mul_f32 v156, 0xbacccccd, v156         ; -mean
    v_mul_f32 v157, 0x3acccccd, v157         ; E[x^2]
    v_fma_f32 v157, -v156, v156, v157
    v_max_f32 v157, 0, v157
    v_add_f32 v157, 0x3727c5ac, v157         ; + 1e-5
    v_rsq_f32 v141, v157
    v_cvt_pk_bf16_f32 v136, v156, v156
    v_mul_f32 v157, v157, v141               ; std
    v_lshlrev_b32 v158, 16, v136
    v_sub_f32 v158, v156, v158
    v_cvt_pk_bf16_f32 v137, v158, v157
    v_and_b32 v159, 0xffff0000, v137
    v_sub_f32 v159, v157, v159
    v_cvt_pk_bf16_f32 v138, v159, 0
    v_mov_b32 v139, 0
    v_mul_f32 v140, 0x{LOG2E:x}, v141
    v_mov_b32 v142, 0
    v_mov_b32 v143, 0
    v_cmp_eq_u32 vcc, 0, v131
    v_lshlrev_b32 v129, 5, v129
    v_add_u32 v129, 0x{WS_STATS:x}, v129
    v_mov_b32 v158, 0x{OOB:x}
    v_cndmask_b32 v129, v158, v129, vcc
    buffer_store_dwordx4 v[136:139], v129, {SWS}, 0 offen sc1
    buffer_store_dwordx4 v[140:143], v129, {SWS}, 0 offen offset:16 sc1
    """)
    return s


def colsum_compute(cdma):
    s = [WaitVM(cdma), I("s_barrier")]
    s += L(f"""
    s_and_b32 {sT0}, {sWV}, 1
    s_lshr_b32 {sT1}, {sWV}, 1
    s_mul_i32 {sT2}, {sT1}, {80 * 128}
    s_add_u32 {sT2}, {sT2}, {sMI}
    s_lshl_b32 {sT3}, {sT0}, 2
    v_bfe_u32 v160, {vLANE}, 4, 1
    v_bfe_u32 v161, {vLANE}, 1, 1
    v_lshl_add_u32 v160, v160, 1, v161
    v_bfe_u32 v161, {vLANE}, 3, 1
    v_lshlrev_b32 v161, 2, v161
    v_xor_b32 v160, v160, v161
    v_xor_b32 v160, {sT3}, v160
    v_and_b32 v161, 1, {vLANE}
    v_lshlrev_b32 v161, 3, v161
    v_lshl_add_u32 v160, v160, 4, v161
    v_bfe_u32 v161, {vLANE}, 2, 2
    v_lshrrev_b32 v162, 5, {vLANE}
    v_lshl_add_u32 v161, v162, 3, v161
    v_lshl_add_u32 v160, v161, 7, v160
    v_add_u32 v160, {sT2}, v160
    """)
    for st in range(5):
        for e in range(2):
            s.append(I(f"ds_read_b64_tr_b16 v[{164 + 4 * st + 2 * e}:{165 + 4 * st + 2 * e}], v160 offset:{st * 2048 + e * 512}"))
    s += L(f"""
    v_mov_b32 v184, {sONE}
    v_mov_b32 v185, {sONE}
    v_mov_b32 v186, {sONE}
    v_mov_b32 v187, {sONE}
    s_and_b32 {sT2}, s2, 3
    s_lshl_b32 {sT2}, {sT2}, 1
    s_add_u32 {sT2}, {sT2}, {sT1}
    s_lshl_b32 {sT2}, {sT2}, 14
    s_lshr_b32 {sT3}, s2, 2
    s_lshl_b32 {sT3}, {sT3}, 8
    s_add_u32 {sT2}, {sT2}, {sT3}
    s_lshl_b32 {sT0}, {sT0}, 7
    s_add_u32 {sT2}, {sT2}, {sT0}
    s_add_u32 {sT2}, {sT2}, 0x{WS_COLS:x}
    s_cmp_lt_u32 s2, 228
    s_cselect_b32 {sT3}, 32, 0
    v_cmp_gt_u32 vcc, {sT3}, {vLANE}
    v_lshlrev_b32 v161, 2, {vLANE}
    v_mov_b32 v162, 0x{OOB:x}
    v_cndmask_b32 v161, v162, v161, vcc
    """)
    for st in range(5):
        c = "0" if st == 0 else "v[188:203]"
        s.append(I(f"v_mfma_f32_32x32x16_bf16 v[188:203], v[184:187], v[{164 + 4 * st}:{167 + 4 * st}], {c}"))
    s.append(I(f"buffer_store_dword v188, v161, {SWS}, {sT2} offen sc1"))
    return s


def prep_poll_addr(role):
    if role == "M":
        s = L(f"""
        s_cmp_eq_u32 {sWV}, 1
        s_cselect_b32 {sT0}, {sU1B}, {sU0B}
        s_cselect_b32 {sT1}, {sKS1}, {sKS0}
        s_cmp_eq_u32 {sWV}, 2
        s_cselect_b32 {sT1}, {sKS2}, {sT1}
        s_cmp_eq_u32 {sWV}, 3
        s_cselect_b32 {sT1}, {sKS3}, {sT1}
        s_lshr_b32 {sT1}, {sT1}, 11
        s_sub_u32 {sT2}, {sT1}, 38
        s_add_u32 {sT3}, {sT1}, 30
        s_cmp_ge_u32 {sT1}, 38
        s_cselect_b32 {sT0}, {sT2}, {sT3}
        v_mov_b32 v{TMP}, {sT0}
        v_lshlrev_b32 v{TMP + 2}, 6, v{TMP}
        v_add_u32 v{TMP + 2}, v{TMP + 2}, {vLANE}
        """)
    else:
        s = L(f"""
        s_mul_i32 {sT0}, {sG}, 80
        s_lshr_b32 {sT1}, {sT0}, 6
        s_add_u32 {sT1}, {sT1}, 10
        s_add_u32 {sT2}, {sG}, 49
        v_subrev_u32 v{TMP}, 4, {vLANE}
        v_bfe_u32 v{TMP + 1}, v{TMP}, 2, 1
        v_bfe_u32 v{TMP + 2}, v{TMP}, 3, 1
        v_mul_u32_u24 v{TMP + 2}, 10, v{TMP + 2}
        v_add3_u32 v{TMP + 1}, v{TMP + 1}, v{TMP + 2}, {sT1}
        v_cmp_gt_u32 vcc, 16, v{TMP}
        v_mov_b32 v{TMP + 2}, {sT2}
        v_cndmask_b32 v{TMP}, v{TMP + 2}, v{TMP + 1}, vcc
        s_add_u32 {sT0}, {sT0}, 640
        v_min_u32 v{TMP + 1}, 159, v0
        v_cmp_le_u32 vcc, 80, v{TMP + 1}
        v_add_u32 v{TMP + 1}, {sT0}, v{TMP + 1}
        v_add_u32 v{TMP + 3}, 560, v{TMP + 1}
        v_cndmask_b32 v{TMP + 1}, v{TMP + 1}, v{TMP + 3}, vcc
        s_lshl_b32 {sT2}, {sT2}, 6
        v_add_u32 v{TMP + 3}, {sT2}, {vLANE}
        v_cmp_le_u32 vcc, 192, v0
        s_nop 1
        v_cndmask_b32 v{TMP + 2}, v{TMP + 1}, v{TMP + 3}, vcc
        """)
    s += L(f"""
    v_and_b32 v{TMP + 1}, 3, {vLANE}
    v_lshl_add_u32 v{TMP}, v{TMP}, 2, v{TMP + 1}
    s_lshl_b32 {sT0}, {sRB}, 4
    s_lshl_b32 {sT1}, {sWV}, 2
    s_add_u32 {sT0}, {sT0}, {sT1}
    v_add_u32 v{TMP + 1}, {sT0}, v{TMP + 1}
    v_cmp_gt_u32 vcc, 4, {vLANE}
    s_nop 1
    v_cndmask_b32 v{TMP}, v{TMP}, v{TMP + 1}, vcc
    v_lshlrev_b32 v{TMP}, 7, v{TMP}
    v_add_u32 {vr(vPA)}, 0x{WS_FLAGS + F_PREP * 128:x}, v{TMP}
    """)
    return s


def aug_loads():
    T = TMP
    s = L(f"""
    v_lshlrev_b32 v{T}, 2, v{T + 2}
    v_subrev_u32 v{T + 1}, 1920, v{T + 2}
    v_cmp_le_u32 vcc, 1920, v{T + 2}
    v_lshlrev_b32 v{T + 1}, 1, v{T + 1}
    v_mov_b32 v{T + 3}, 0x{OOB:x}
    v_cndmask_b32 v{T + 1}, v{T + 3}, v{T + 1}, vcc
    """)
    for p in range(8):
        s.append(lit(sT0, WS_COLS + p * 16384))
        s.append(I(f"buffer_load_dword v{T + 4 + p}, v{T}, {SWS}, {sT0} offen sc1"))
    s += L(f"""
    buffer_load_ushort v{T + 12}, v{T + 1}, {SB1}, 0 offen
    s_lshl_b32 {sT0}, {sRB}, 7
    s_lshl_b32 {sT1}, {sWV}, 5
    s_add_u32 {sT0}, {sT0}, {sT1}
    s_lshl_b32 {sT0}, {sT0}, 5
    s_add_u32 {sT0}, {sT0}, 0x{WS_STATS:x}
    v_and_b32 v{T}, 31, {vLANE}
    v_lshlrev_b32 v{T}, 5, v{T}
    v_cmp_gt_u32 vcc, 32, {vLANE}
    buffer_load_dwordx2 v[{T + 14}:{T + 15}], v{T}, {SWS}, {sT0} offen offset:16 sc1
    v_cndmask_b32 v{T + 1}, v{T + 3}, v{T}, vcc
    buffer_load_dwordx4 {vr(vBAUG, 4)}, v{T + 1}, {SWS}, {sT0} offen sc1
    """)
    return s


def aug_build():
    T = TMP
    s = L(f"""
    v_add_f32 v{T + 4}, v{T + 4}, v{T + 5}
    v_add_f32 v{T + 6}, v{T + 6}, v{T + 7}
    v_add_f32 v{T + 8}, v{T + 8}, v{T + 9}
    v_add_f32 v{T + 10}, v{T + 10}, v{T + 11}
    v_add_f32 v{T + 4}, v{T + 4}, v{T + 6}
    v_add_f32 v{T + 8}, v{T + 8}, v{T + 10}
    v_lshlrev_b32 v{T}, 4, v0
    v_add_f32 v{T + 4}, v{T + 4}, v{T + 8}
    v_add_u32 v{T}, 0x{L_AUG:x}, v{T}
    v_cvt_pk_bf16_f32 v{T + 5}, v{T + 4}, v{T + 4}
    v_mov_b32 v{T + 11}, 0
    v_lshlrev_b32 v{T + 6}, 16, v{T + 5}
    v_and_b32 v{T + 5}, 0xffff, v{T + 5}
    v_sub_f32 v{T + 6}, v{T + 4}, v{T + 6}
    v_lshl_or_b32 v{T + 9}, v{T + 12}, 16, v{T + 5}
    v_cvt_pk_bf16_f32 v{T + 8}, v{T + 4}, v{T + 6}
    v_mov_b32 v{T + 10}, v{T + 12}
    v_mov_b32 {vr(vC)}, v{T + 14}
    v_mov_b32 {vr(vRSTD)}, v{T + 15}
    ds_write_b128 v{T}, v[{T + 8}:{T + 11}]
    """)
    return s


def epi_act(acc, K, soff, tile, T=TMP):
    U, A, O = T, T + 4, T + 8
    s = []
    for b in range(4):
        e = [acc + 4 * b + i for i in range(4)]
        s += [I(f"v_mul_f32 v{r}, v{r}, {vr(vC)}") for r in e]
        s += [I(f"v_exp_f32 v{U + i}, v{e[i]}") for i in range(4)]
        s += [I(f"v_fma_f32 v{A + i}, v{U + i}, -0.5, -1.0") for i in range(4)]
        s += [I(f"v_fma_f32 v{A + i}, v{U + i}, v{A + i}, {K}") for i in range(4)]
        s += [I(f"v_rcp_f32 v{A + i}, v{A + i}") for i in range(4)]
        s += [I(f"v_fma_f32 v{e[i]}, v{e[i]}, v{A + i}, v{e[i]}") for i in range(4)]
        s += [I(f"v_cvt_pk_bf16_f32 v{O + 2 * b}, v{e[0]}, v{e[1]}"), I(f"v_cvt_pk_bf16_f32 v{O + 2 * b + 1}, v{e[2]}, v{e[3]}")]
        if b & 1:
            o = O + 4 * (b >> 1)
            s.append(I(f"buffer_store_dwordx4 v[{o}:{o + 3}], {vr(vST)}, {SWS}, {soff} offen offset:{tile * 1024 + (b >> 1) * 256} sc1"))
    return s


def epi_q(acc, soff, tile, T=TMP):
    O = T + 8
    s = []
    for b in range(2):
        e = [acc + 8 * b + i for i in range(8)]
        s += [I(f"v_mul_f32 v{r}, v{r}, {vr(vC)}") for r in e]
        s += [I(f"v_cvt_pk_bf16_f32 v{O + 4 * b + i}, v{e[2 * i]}, v{e[2 * i + 1]}") for i in range(4)]
        s.append(I(f"buffer_store_dwordx4 v[{O + 4 * b}:{O + 4 * b + 3}], {vr(vST)}, {SWS}, {soff} offen offset:{tile * 1024 + b * 256} sc1"))
    return s


class Stream:
    PD = 3

    def __init__(self, pos=0):
        self.fr = []
        self.ev = {}
        self.pos0 = pos

    def add(self, reads, mfma):
        self.fr.append((reads, mfma))
        return len(self.fr) - 1

    def event(self, j, insts):
        self.ev.setdefault(j, []).extend(insts)

    def reads(self, j):
        if j >= len(self.fr):
            return self.ev.get(j, [])
        return self.ev.get(j, []) + self.fr[j][0](RING[(j + self.pos0) % 4])

    def build(self):
        pro = []
        for j in range(min(self.PD, len(self.fr))):
            pro += self.reads(j)
        groups = []
        for i in range(len(self.fr)):
            groups.append([self.fr[i][1](RING[(i + self.pos0) % 4])] + self.reads(i + self.PD))
        return pro, groups


def tr_unit(tile, slot, step):
    base = vTA[tile][slot >> 2]
    off = (slot & 3) * 16384 + step * 2048
    return lambda d: [I(f"ds_read_b64_tr_b16 v[{d}:{d + 1}], {vr(base)} offset:{off}"),
                      I(f"ds_read_b64_tr_b16 v[{d + 2}:{d + 3}], {vr(base)} offset:{off + 512}")]


def mm(acc, kstep, first):
    return lambda a: I(f"v_mfma_f32_32x32x16_bf16 {vr(acc, 16)}, {vr(a, 4)}, {ar(4 * kstep, 4)}, " + ("0" if first else vr(acc, 16)))


def aug_frag(base, off, acc):
    return (lambda d: [I(f"ds_read_b128 {vr(d, 4)}, {vr(base)} offset:{off}")],
            lambda a: I(f"v_mfma_f32_32x32x16_bf16 {vr(acc, 16)}, {vr(a, 4)}, {vr(vBAUG, 4)}, {vr(acc, 16)}"))


def x_reads(stage, slot):
    return [I(f"ds_read_b128 {ar(16 * stage + 4 * k, 4)}, {vr(vXR[slot >> 2][k])} offset:{(slot & 3) * 16384}") for k in range(4)]


W2REG = {}
for n in range(4):
    W2REG[n] = ("a", 160 + 20 * n)
for n in range(4, 10):
    W2REG[n] = ("v", 128 + 20 * (n - 4))
for n in range(10, 14):
    W2REG[n] = ("a", 80 + 20 * (n - 10))
for n in range(14, 18):
    W2REG[n] = ("a", 160 + 20 * (n - 14))
W2REG[18] = ("v", 128)


def w2_loads(n, st=sT3, vW2A=vW2A, vW2B=vW2B):
    f, b = W2REG[n]
    s = [lit(st, n * 20480)]
    for ct in range(5):
        r = f"{f}[{b + 4 * ct}:{b + 4 * ct + 3}]"
        if ct < 4:
            s.append(I(f"buffer_load_dwordx4 {r}, {vr(vW2A)}, {SWS}, {st} offen offset:{ct * 1024} sc1"))
        else:
            s.append(I(f"buffer_load_dwordx4 {r}, {vr(vW2B)}, {SWS}, {st} offen sc1"))
    return s


def w2_poll():
    T = TMP + 16
    a = L(f"""
    v_lshlrev_b32 {vr(vPA)}, 7, {vLANE}
    v_add_u32 {vr(vPA)}, 0x{WS_FLAGS + F_W2 * 128:x}, {vr(vPA)}
    v_add_u32 v{T}, {64 * 128}, {vr(vPA)}
    """) + poll_issue() + poll_issue(T, T + 1)
    c1, b1 = poll_check()
    c2, b2 = poll_check(T, T + 1)
    return a, c1 + b1 + c2 + b2


def repack_setup(rnd):
    b = int(SR[2:SR.index(":")])
    V = TMP + 16
    s = L(f"""
    s_lshl_b32 {sT0}, {sMI}, 2
    s_add_u32 {sT0}, {sT0}, {sWV}
    s_add_u32 {sT0}, {sT0}, {512 * rnd}
    s_mul_i32 {sT1}, {sT0}, 6554
    s_lshr_b32 {sT1}, {sT1}, 16              ; ks74
    s_mul_i32 {sT2}, {sT1}, 10
    s_sub_u32 {sT2}, {sT0}, {sT2}            ; cu
    s_cmp_lt_u32 {sT1}, 54
    s_cselect_b32 s{b}, s18, s10
    s_cselect_b32 s{b + 1}, s19, s11
    s_cselect_b32 s{b + 2}, 2211840, 819200
    s_cselect_b32 s3, 0, 2
    s_and_b32 s{b + 1}, s{b + 1}, 0xffff
    s_cmp_lt_u32 {sT0}, 740
    s_cselect_b32 s{b + 2}, s{b + 2}, 0
    s_cselect_b32 s99, 0, 0x{OOB:x}
    s_add_u32 s3, s3, {sT1}                  ; slot
    s_mul_i32 s3, s3, 5120
    s_add_u32 s3, s3, 0x{WS_W2F:x}
    """)
    for c in range(4):
        s += L(f"""
        s_lshl_b32 {sT0}, {sT2}, 2
        s_add_u32 {sT0}, {sT0}, {c}
        s_mul_i32 {sT3}, {sT0}, 205
        s_lshr_b32 {sT3}, {sT3}, 10
        s_mul_i32 s{20 + c}, {sT3}, {76 * 5120 - 5 * 1024}
        s_lshl_b32 {sT0}, {sT0}, 10
        s_add_u32 s{20 + c}, s{20 + c}, {sT0}
        s_add_u32 s{20 + c}, s{20 + c}, s3
        """)
    s += L(f"""
    v_lshrrev_b32 v{V}, 3, {vLANE}
    v_lshrrev_b32 v{V + 1}, 5, {vLANE}
    v_mul_u32_u24 v{V + 1}, 16, v{V + 1}
    s_cmp_ge_u32 {sT1}, 70
    s_cselect_b32 {sT0}, 1, 0
    v_mul_u32_u24 v{V + 1}, {sT0}, v{V + 1}
    v_add_u32 v{V}, v{V}, v{V + 1}           ; rem: (i&3) + 20e = i + 16e
    v_mul_u32_u24 v{V}, 1280, v{V}
    v_and_b32 v{V + 1}, 7, {vLANE}
    v_lshl_add_u32 v{V}, v{V + 1}, 4, v{V}
    s_lshl_b32 {sT0}, {sT1}, 5
    s_sub_u32 {sT3}, {sT1}, 54
    s_mul_i32 {sT3}, {sT3}, 40
    s_cmp_ge_u32 {sT1}, 54
    s_cselect_b32 {sT0}, {sT3}, {sT0}
    s_cselect_b32 s3, {20 * 1280}, {16 * 1280}
    s_sub_u32 {sT3}, {sT1}, 70
    s_mul_i32 {sT3}, {sT3}, 160
    s_add_u32 {sT3}, {sT3}, 16
    s_cmp_ge_u32 {sT1}, 70
    s_cselect_b32 {sT0}, {sT3}, {sT0}
    s_cselect_b32 s3, {80 * 1280}, s3
    s_cselect_b32 {sT1}, {40 * 1280}, {8 * 1280}
    s_mul_i32 {sT0}, {sT0}, 1280
    s_lshl_b32 {sT2}, {sT2}, 7
    s_add_u32 {sT0}, {sT0}, {sT2}
    s_add_u32 m0, {sLQ}, 0x{L_CB_M:x}
    s_add_u32 {sT2}, {sT0}, {sT1}
    buffer_load_dwordx4 v{V}, {SR}, {sT0} offen lds
    s_add_u32 m0, {sLQ}, 0x{L_CB_M + 1024:x}
    s_add_u32 {sT0}, {sT0}, s3
    buffer_load_dwordx4 v{V}, {SR}, {sT2} offen lds
    s_add_u32 m0, {sLQ}, 0x{L_CB_M + 2048:x}
    s_add_u32 {sT2}, {sT2}, s3
    buffer_load_dwordx4 v{V}, {SR}, {sT0} offen lds
    s_add_u32 m0, {sLQ}, 0x{L_CB_M + 3072:x}
    s_nop 0
    buffer_load_dwordx4 v{V}, {SR}, {sT2} offen lds
    """)
    return s


def repack_finish(dmas, R):
    V = TMP + 16
    s = L(f"""
    v_lshrrev_b32 v{V}, 4, {vLANE}
    v_bfe_u32 v{V + 1}, {vLANE}, 2, 2
    v_lshl_add_u32 v{V}, v{V}, 3, v{V + 1}
    v_and_b32 v{V + 1}, 3, {vLANE}
    v_lshlrev_b32 v{V + 1}, 3, v{V + 1}
    v_lshl_add_u32 v{V}, v{V}, 7, v{V + 1}
    v_add_u32 v{V}, {sLQ}, v{V}
    v_add_u32 v{V}, 0x{L_CB_M:x}, v{V}
    v_lshlrev_b32 v{V + 1}, 4, {vLANE}
    v_or_b32 v{V + 1}, s99, v{V + 1}
    """)
    s.append(WaitVM(dmas))
    rd = []
    for c in range(4):
        for e in range(2):
            rd.append(I(f"ds_read_b64_tr_b16 v[{R + 4 * c + 2 * e}:{R + 4 * c + 2 * e + 1}], v{V} offset:{c * 32 + e * 512}"))
    s += rd
    st = [I(f"buffer_store_dwordx4 v[{R + 4 * c}:{R + 4 * c + 3}], v{V + 1}, {SWS}, s{20 + c} offen sc1") for c in range(4)]
    s += st
    return s, rd, st


def role_M(out, st, cdma):
    s = [Label("LroleM")]
    bu1 = int(SU1[2:SU1.index(":")])
    bu3 = int(SU3[2:SU3.index(":")])
    s += L(f"""
    s_lshl_b32 {sU0B}, {sG}, 7
    s_lshl_b32 {sT0}, {sG}, 11
    s_add_u32 {sKS0}, {sT0}, {76 * 1024}
    s_cmp_lt_u32 {sG}, 2
    s_cselect_b32 s{bu1}, s6, s14
    s_cselect_b32 s{bu1 + 1}, s7, s15
    s_cselect_b32 s{bu1 + 2}, 2457600, 2211840
    s_cselect_b32 {sU1CS}, 3840, 3456
    s_cselect_b32 {sT1}, 8, -2
    s_cselect_b32 {sT2}, {76 * 1024}, 0
    s_cselect_b32 {sK1}, 0xff800000, 0xbf800000
    s_cselect_b32 {sFL1}, {F_Q}, {F_ACT}
    s_cselect_b32 {sT3}, 4, 5
    s_and_b32 s{bu1 + 1}, s{bu1 + 1}, 0xffff
    s_mov_b32 s{bu1 + 3}, 0x20000
    s_add_u32 {sT1}, {sT1}, {sG}
    s_lshl_b32 {sU1B}, {sT1}, 7
    s_lshl_b32 {sKS1}, {sT1}, 11
    s_add_u32 {sKS1}, {sKS1}, {sT2}
    s_lshl_b32 {sT2}, {sRB}, {sT3}
    s_add_u32 {sFL1}, {sFL1}, {sT2}
    s_add_u32 {sFL1}, {sFL1}, {sT1}
    s_lshl_b32 {sFL1}, {sFL1}, 7
    s_add_u32 {sFL1}, {sFL1}, 0x{WS_FLAGS:x}
    """)
    s += w_offsets(vWQ, 3840)
    first = xs_load(0, 0) + xs_load(1, 16384) + dma4(SWQ, vWQ, sU0B, 2 * 16384) + xs_load(2, 3 * 16384)
    XS = {0: vmops(first)[0:4], 1: vmops(first)[4:8], 2: vmops(first)[12:16]}
    WC = {(0, 0): vmops(first)[8:12]}
    s += first
    s += common_setup()
    s += w_offsets(vU1, sU1CS)
    s += L(f"""
    s_lshl_b32 {sU1CS}, {sU1CS}, 7
    s_add_u32 {sT0}, {sG}, 6
    s_lshl_b32 {sU2B}, {sT0}, 7
    s_lshl_b32 {sKS2}, {sT0}, 11
    s_lshl_b32 {sT1}, {sRB}, 5
    s_add_u32 {sT1}, {sT1}, {F_ACT}
    s_add_u32 {sFL2}, {sT1}, {sT0}
    s_lshl_b32 {sFL2}, {sFL2}, 7
    s_add_u32 {sFL2}, {sFL2}, 0x{WS_FLAGS:x}
    s_add_u32 {sFL3}, {sFL2}, {8 * 128}
    s_add_u32 {sU3B}, {sU2B}, {8 * 128}
    s_add_u32 {sKS3}, {sKS2}, {8 * 2048}
    s_lshl_b32 {sT1}, {sRB}, 4
    s_add_u32 {sT1}, {sT1}, {sG}
    s_add_u32 {sT1}, {sT1}, {F_Q}
    s_lshl_b32 {sFL0}, {sT1}, 7
    s_add_u32 {sFL0}, {sFL0}, 0x{WS_FLAGS:x}
    s_mov_b32 s{bu3}, s14
    s_and_b32 s{bu3 + 1}, s15, 0xffff
    s_cmp_lt_u32 {sG}, 5
    s_cselect_b32 s{bu3 + 2}, 2211840, 0
    s_cselect_b32 {sKS3}, {sKS3}, {sKS2}
    s_mov_b32 s{bu3 + 3}, 0x20000
    """)
    s += stats_compute()
    pst = vmops(s)[-2:]
    cs = colsum_compute(cdma)
    pst += vmops(cs)
    s += cs
    s += stamp(1)

    def load(kind, idx, slot):
        if kind == "X":
            c = xs_load(idx, slot * 16384)
            XS[idx] = vmops(c)
        else:
            u, ch = idx
            if u == 0:
                c = [I(f"s_add_u32 {sT0}, {sU0B}, {ch * 128 * 3840}")] + dma4(SWQ, vWQ, sT0, slot * 16384)
            elif u == 1:
                c = ([I(f"s_add_u32 {sU1B}, {sU1B}, {sU1CS}")] if ch else []) + dma4(SU1, vU1, sU1B, slot * 16384)
            else:
                c = [I(f"s_add_u32 {sT0}, {sU2B if u == 2 else sU3B}, {ch * 128 * 3456}")] + dma4(SW1 if u == 2 else SU3, vW1, sT0, slot * 16384)
            WC[idx] = vmops(c)
        SLOT[(kind, idx)] = slot
        return c
    SLOT = {("X", 0): 0, ("X", 1): 1, ("W", (0, 0)): 2, ("X", 2): 3}
    s += load("X", 3, 4) + load("W", (0, 1), 5) + load("X", 4, 6) + load("X", 5, 7)
    s += small_dmas()
    s += L(f"""
    s_add_u32 {sT0}, {sG}, 3
    s_and_b32 {sT0}, {sT0}, 7
    s_lshl_b32 {sT0}, {sT0}, 4
    s_add_u32 {sMI}, {sT0}, {sRB}
    """)
    s += prep_poll_addr("M")
    plan = {0: [None, ("W", (0, 2), 0), ("X", 6, 1)],
            1: [("X", 7, 2), ("W", (0, 3), 3), ("X", 8, 4)],
            2: [("X", 9, 5), ("W", (0, 4), 6), ("W", (1, 0), 7)],
            3: [("W", (1, 1), 0), ("W", (1, 2), 1), ("W", (1, 3), 2)],
            4: [("W", (1, 4), 3), ("W", (2, 0), 4), ("W", (2, 1), 5)]}
    rp_dma = None
    for c in range(5):
        s.append(WaitVM(XS[2 * c]))
        xr = x_reads(2 * c, SLOT[("X", 2 * c)])
        s += xr
        s.append(WaitVM(XS[2 * c + 1]))
        xr2 = x_reads(2 * c + 1, SLOT[("X", 2 * c + 1)])
        s += xr2
        s += [WaitVM(WC[(0, c)]), I("s_barrier")]
        S = Stream()
        for k in range(8):
            for t in range(2):
                S.add(tr_unit(t, SLOT[("W", (0, c))], k), mm(ACC[t], 8 * c + k, c == 0 and k == 0))
        pro, groups = S.build()
        side = []
        if plan[c][0]:
            side += load(*plan[c][0])
        if c == 4:
            rp = repack_setup(0)
            rp_dma = vmops(rp)
        side2 = [WaitLG(xr + xr2)]
        if c == 4:
            side2 = rp + side2
        side2 += load(*plan[c][1]) + load(*plan[c][2])
        if c == 2:
            side2 += poll_issue()
        pre = []
        if c == 3:
            c1, b1 = poll_check()
            pre = c1 + b1 + aug_loads()
        s += pro
        body, rest = merge(groups, pre + side + side2, budget=28)
        s += body + rest
        if c == 0:
            s += [WaitVM(pst), I("s_barrier"), I(f"s_lshl_b32 {sT0}, s2, 7"), I(f"s_add_u32 {sT0}, {sT0}, 0x{WS_FLAGS + F_PREP * 128:x}")] + publish(sT0)
    s += stamp(2)
    S = Stream()
    idx = {}
    accs = {2: ACC[2], 3: ACC[0], 4: ACC[1], 5: ACC[2], 6: ACC[0], 7: ACC[1]}
    augw = aug_build()
    for T in range(2, 8):
        u, t = T >> 1, T & 1
        for k in range(40):
            if T == 2 and k == 16:
                idx["aug0"] = S.add(*aug_frag(vAUG, 0, ACC[0]))
                S.add(*aug_frag(vAUG, 512, ACC[1]))
            j = S.add(None, mm(accs[T], k, k == 0))
            idx[(T, k)] = j
        idx[(T, "aug")] = S.add(*aug_frag(vAUG, u * 1024 + t * 512, accs[T]))
    bar = lambda: I("s_barrier")
    S.event(idx[(2, 0)], [WaitVM(WC[(1, 0)]), bar()] + load("W", (2, 2), 6))
    S.event(idx[(2, 8)], [WaitVM(WC[(1, 1)]), bar()])
    S.event(idx["aug0"], [WaitLG(augw[-1]), WaitVM(WC[(1, 2)]), bar()])
    S.event(idx[(2, 24)], [WaitVM(WC[(1, 3)]), bar()])
    S.event(idx[(2, 32)], [WaitVM(WC[(1, 4)]), bar()])
    eq = epi_q(ACC[0], sKS0, 0) + epi_q(ACC[1], sKS0, 1)
    rf0, rd0, st0 = repack_finish(rp_dma, 128)
    rp1 = repack_setup(1)
    rf1, rd1, st1 = repack_finish(vmops(rp1), 144)
    S.event(idx[(3, 19)], [WaitVM(vmops(eq)), bar()] + publish(sFL0) + load("W", (2, 3), 7) + load("W", (2, 4), 0))
    w2fl = L(f"""
    s_lshl_b32 {sT1}, {sMI}, 7
    s_add_u32 {sT1}, {sT1}, 0x{WS_FLAGS + F_W2 * 128:x}""")
    S.event(idx[(4, 0)], [WaitVM(WC[(2, 2)]), bar()])
    S.event(idx[(4, 3)], [bar()] + load("W", (3, 0), 1) + load("W", (3, 1), 2) + load("W", (3, 2), 3))
    S.event(idx[(4, 24)], [WaitVM(WC[(2, 4)] + st1), bar()] + w2fl + publish(sT1))
    e2 = epi_act(accs[2], sK1, sKS1, 0)
    e3 = epi_act(accs[3], sK1, sKS1, 1)
    e4 = epi_act(accs[4], "-1.0", sKS2, 0)
    e5 = epi_act(accs[5], "-1.0", sKS2, 1)
    e6 = epi_act(accs[6], "-1.0", sKS3, 0)
    e7 = epi_act(accs[7], "-1.0", sKS3, 1)
    S.event(idx[(5, 19)], [WaitVM(vmops(e3)), bar()] + publish(sFL1) + load("W", (3, 3), 4) + load("W", (3, 4), 5))
    S.event(idx[(6, 0)], [WaitVM(WC[(3, 2)]), bar()])
    S.event(idx[(6, 24)], [WaitVM(WC[(3, 4)]), bar()])
    S.event(idx[(7, 20)], [WaitVM(vmops(e5)), bar()] + publish(sFL2))
    for T in range(2, 8):
        u, t = T >> 1, T & 1
        for k in range(40):
            S.fr[idx[(T, k)]] = (tr_unit(t, SLOT[("W", (u, k >> 3))], k & 7), S.fr[idx[(T, k)]][1])
    pro, groups = S.build()
    seg = lambda a, b: groups[a:b]
    s += pro
    a0 = idx["aug0"]
    body, rest = merge(seg(0, a0 - 3), augw + rf0)
    s += body + rest
    body, rest = merge(seg(a0 - 3, a0 + 5), [WaitLG(rd0)] + rp1)
    s += body + rest
    body, rest = merge(seg(a0 + 5, idx[(3, 0)]), eq)
    s += body + rest
    s += stamp(3)
    body, rest = merge(seg(idx[(3, 0)], idx[(4, 0)]), e2 + rf1, start=2)
    s += body + rest
    body, rest = merge(seg(idx[(4, 0)], idx[(5, 0)]), e3, start=2)
    s += body + rest
    s += stamp(4)
    wi, wc = w2_poll()
    body, rest = merge(seg(idx[(5, 0)], idx[(6, 0)] - 3), e4[:40] + wi + e4[40:], start=2)
    s += body + rest
    st = out.emit(s, st)
    stM3 = st.copy()
    out.emit([I(f"s_cmp_ge_u32 {sG}, 5"), I("s_cbranch_scc1 LtailM3")], st)
    s = []
    s += [g for grp in seg(idx[(6, 0)] - 3, idx[(6, 0)]) for g in grp]
    pf = []
    for n in range(10):
        pf.append(w2_loads(n))
    def spread(e, loads):
        o = []
        step = max(1, len(e) // (len(loads) + 1))
        li = 0
        for i, x in enumerate(e):
            o.append(x)
            if (i + 1) % step == 0 and li < len(loads):
                o.append(loads[li]); li += 1
        return o + loads[li:]
    flat = lambda l: [x for y in l for x in y]
    body, rest = merge(seg(idx[(6, 0)], idx[(7, 0)]), wc + spread(e5, flat(pf[0:5])), start=2, budget=28)
    s += body + rest
    body, rest = merge(seg(idx[(7, 0)], len(groups)), spread(e6, flat(pf[5:10])), start=2, budget=28)
    s += body + rest
    s += e7
    s += [I(f"s_mov_b32 {sFLL}, {sFL3}"), I("s_branch Ljoin")]
    st = out.emit(s, st)
    s = [Label("LtailM3"), I("s_nop 3")]
    s += [grp[0] for grp in seg(idx[(6, 0)] - 3, idx[(6, 0)])]
    wi2, wc2 = w2_poll()
    e5b = epi_act(accs[5], "-1.0", sKS2, 1)
    s += wi2 + e5b + wc2
    for n in range(10):
        s += w2_loads(n)
    s += [I(f"s_mov_b32 {sFLL}, {sFL2}"), I("s_branch Ljoin")]
    stM3 = out.emit(s, stM3)
    return [st, stM3]


def role_KV(out, st, cdma):
    s = [Label("LroleKV")]
    s += L(f"""
    s_mul_i32 {sT0}, {sG}, 160
    s_add_u32 {sT0}, {sT0}, 1280
    s_mul_i32 {sT1}, {sWV}, {16 * 3840}
    s_add_u32 {sT0}, {sT0}, {sT1}
    """)
    for n in range(5):
        s += L(f"""
        v_add_u32 v148, {64 * n}, {vLANE}
        v_mul_u32_u24 v149, 3277, v148
        v_lshrrev_b32 v149, 16, v149
        v_mul_u32_u24 v150, 20, v149
        v_sub_u32 v150, v148, v150
        v_cmp_le_u32 vcc, 10, v150
        v_lshlrev_b32 v150, 4, v150
        v_add_u32 v151, {1280 - 160}, v150
        v_cndmask_b32 v150, v150, v151, vcc
        v_mul_u32_u24 v149, 3840, v149
        v_add3_u32 {vr(vKD[n])}, v149, v150, {sT0}
        """)
        if 0 < n < 4:
            s.append(I(f"v_subrev_u32 {vr(vKD[n])}, {1024 * n}, {vr(vKD[n])}"))
    s += [I(f"s_mul_i32 {sU1B}, {sWV}, 5120")]
    XS, KS, WC = {}, {}, {}

    def xs(i):
        c = xs_load(i, (i % 4) * 16384)
        XS[i] = vmops(c)
        return c

    def ks(i):
        base = L_KR + (i % 4) * 20480
        c = [lit(sT0, i * 64 * 3840), I(f"s_add_u32 m0, {sU1B}, 0x{base:x}")]
        for n in range(4):
            c.append(I(f"buffer_load_dwordx4 {vr(vKD[n])}, {SWQ}, {sT0} offen" + (f" offset:{n * 1024}" if n else "") + " lds"))
        c += [I(f"s_add_u32 m0, {sU1B}, 0x{base + 4096:x}"), I("s_nop 0"), I(f"buffer_load_dwordx4 {vr(vKD[4])}, {SWQ}, {sT0} offen lds")]
        KS[i] = vmops(c)
        return c
    WSLOT = {0: 2, 1: 3, 2: 0, 3: 1, 4: 4}

    def wc(ch):
        c = [I(f"s_add_u32 {sT0}, {sU3B}, {ch * 128 * 3456}")] + dma4(SW1, vW1, sT0, WSLOT[ch] * 16384)
        WC[ch] = vmops(c)
        return c
    s += xs(0) + ks(0) + xs(1) + ks(1)
    s += common_setup()
    s += L(f"""
    s_add_u32 {sT0}, {sG}, 19
    s_lshl_b32 {sU3B}, {sT0}, 7
    s_lshl_b32 {sKS3}, {sT0}, 11
    s_lshl_b32 {sT1}, {sRB}, 5
    s_add_u32 {sT1}, {sT1}, {F_ACT}
    s_add_u32 {sFLL}, {sT1}, {sT0}
    s_lshl_b32 {sFLL}, {sFLL}, 7
    s_add_u32 {sFLL}, {sFLL}, 0x{WS_FLAGS:x}
    s_lshl_b32 {sT0}, {sG}, 4
    s_add_u32 {sT0}, {sT0}, {sRB}
    s_add_u32 {sT0}, {sT0}, {F_KV}
    s_lshl_b32 {sFL0}, {sT0}, 7
    s_add_u32 {sFL0}, {sFL0}, 0x{WS_FLAGS:x}
    """)
    s += L(f"""
    v_bfe_u32 v148, {vLANE}, 2, 2
    v_lshrrev_b32 v149, 5, {vLANE}
    v_lshl_add_u32 v148, v149, 3, v148
    v_mul_u32_u24 v148, 320, v148
    v_add_u32 v148, 0x{L_KR:x}, v148
    v_and_b32 v149, 3, {vLANE}
    v_lshlrev_b32 v149, 3, v149               ; 8*c
    v_bfe_u32 v150, {vLANE}, 2, 2
    v_lshlrev_b32 v150, 3, v150               ; 8*((m>>2)&3)
    v_and_b32 v151, 3, {vLANE}
    v_lshlrev_b32 v151, 4, v151
    v_add_u32 v151, 0x{L_AUG:x}, v151
    v_and_b32 v152, 16, {vLANE}
    v_cmp_eq_u32 vcc, 0, v152
    """)
    for t in range(5):
        pc = lambda mc: P[mc & 1][4 * t + (mc >> 1)]
        c0 = sum(pc(mc) << (8 * mc) for mc in range(4))
        c1 = sum(pc(4 + mc) << (8 * mc) for mc in range(4))
        s += L(f"""
        v_mov_b32 v152, 0x{c1:x}
        v_mov_b32 v153, 0x{c0:x}
        v_cndmask_b32 v152, v152, v153, vcc
        v_bfe_u32 v153, v152, v149, 8
        v_lshl_add_u32 {vr(vKT[0][t])}, v153, 3, v148
        v_add_u32 {vr(vKT[1][t])}, {2 * 20480}, {vr(vKT[0][t])}
        v_bfe_u32 v153, v152, v150, 8
        v_lshl_add_u32 {vr(vKAUG[t])}, v153, 6, v151
        """)
    s += stats_compute()
    pst = vmops(s)[-2:]
    cs = colsum_compute(cdma)
    pst += vmops(cs)
    s += cs
    s += stamp(1)
    s += xs(2) + ks(2) + xs(3)
    wp = L(f"""
    s_mul_i32 {sT0}, {sG}, 3200
    v_lshlrev_b32 v152, 4, v0
    s_lshl_b32 {sT1}, {sWV}, 10
    s_add_u32 m0, {sT1}, 0x{L_WPH:x}
    s_nop 0
    buffer_load_dwordx4 v152, {SPH}, {sT0} offen lds
    """)
    s += wp + small_dmas()
    small = vmops(wp) + vmops(s)[-2:]
    s += prep_poll_addr("KV")
    T = 76
    wf = L(f"""
    v_lshrrev_b32 v{T}, 5, {vLANE}            ; hk
    v_and_b32 v{T + 1}, 1, {vLANE}            ; h'
    v_bfe_u32 v{T + 2}, {vLANE}, 4, 1
    v_bfe_u32 v{T + 3}, {vLANE}, 1, 1
    v_lshl_add_u32 v{T + 2}, v{T + 2}, 1, v{T + 3}   ; q
    v_bfe_u32 v{T + 3}, {vLANE}, 2, 2
    v_mul_u32_u24 v{T + 3}, 40, v{T + 3}
    v_add_u32 v{T + 3}, 0x{L_WPH:x}, v{T + 3}  ; + r*40
    v_mov_b32 v{T + 4}, 0x{L_ZERO:x}
    """)
    PAIRS = [(0, 0), (0, 1), (0, 2), (1, 0), (1, 1), (1, 2), (1, 3), (1, 4), (2, 2), (2, 3), (2, 4)]
    for tp in range(3):
        wf += L(f"""
        v_add_u32 v{T + 5}, {4 * tp}, v{T + 2}
        v_mul_u32_u24 v{T + 6}, 52, v{T + 5}
        v_lshrrev_b32 v{T + 6}, 8, v{T + 6}          ; slot
        v_mul_u32_u24 v{T + 7}, 5, v{T + 6}
        v_sub_u32 v{T + 5}, v{T + 5}, v{T + 7}
        v_lshl_add_u32 v{T + 5}, v{T + 5}, 3, v{T + 3}
        v_xor_b32 v{T + 7}, v{T}, v{T + 1}
        v_lshl_add_u32 v{T + 6}, v{T + 7}, 2, v{T + 6}
        v_cmp_eq_u32 {sM0}, 0, v{T + 6}
        v_cmp_eq_u32 {sM1}, 1, v{T + 6}
        """)
        for fi, (tq, p) in enumerate(PAIRS):
            if tq != tp:
                continue
            for e in range(2):
                r4 = 2 * p + e
                a = [(P[h][r4] // 5) * 800 + (P[h][r4] % 5) * 160 for h in range(2)]
                m = sM0 if r4 < 5 else sM1
                wf += L(f"""
                v_mul_i32_i24 v{T + 8}, {a[1] - a[0]}, v{T}
                v_add3_u32 v{T + 8}, v{T + 8}, v{T + 5}, {sT3}
                v_cndmask_b32 v{T + 8}, v{T + 4}, v{T + 8}, {m}
                ds_read_b64_tr_b16 {ar(aWPH + 4 * fi + 2 * e, 2)}, v{T + 8}
                """)
                wf.insert(len(wf) - 4, lit(sT3, a[0]))
    augw = aug_build()
    for i in range(10):
        s.append(WaitVM(XS[i]))
        xr = x_reads(i, i % 4)
        s += xr
        s += [WaitVM(KS[i])]
        if i == 9:
            s += [WaitLG(augw[-1])]
        s += [I("s_barrier")]
        S = Stream(pos=0)
        for k in range(4):
            for t in range(5):
                base = vKT[(i % 4) >> 1][t]
                off = ((i % 4) & 1) * 20480 + k * 5120
                S.add((lambda b, o: (lambda d: [I(f"ds_read_b64_tr_b16 v[{d}:{d + 1}], {vr(b)} offset:{o}"),
                                                I(f"ds_read_b64_tr_b16 v[{d + 2}:{d + 3}], {vr(b)} offset:{o + 1280}")]))(base, off),
                      mm(KA + 16 * t, 4 * i + k, i == 0 and k == 0))
        if i == 9:
            for t in range(5):
                S.add(*aug_frag(vKAUG[t], 0, KA + 16 * t))
        pro, groups = S.build()
        side = []
        if 1 <= i <= 6:
            side += ks(i + 3)
        if i == 9:
            side += wc(4)
        side.append(WaitLG(xr))
        side += xs(i + 4) if i + 4 <= 9 else wc(i - 6)
        if i == 3:
            side += [WaitVM(small)]
        if i == 4:
            side += wf
        if i == 5:
            side += poll_issue()
        if i == 6:
            c1, b1 = poll_check()
            side = c1 + b1 + aug_loads() + side
        if i == 8:
            side += augw
        s += pro
        body, rest = merge(groups, side, budget=24)
        s += body + rest
        if i == 0:
            s += [WaitVM(pst), I("s_barrier"), I(f"s_lshl_b32 {sT0}, s2, 7"), I(f"s_add_u32 {sT0}, {sT0}, 0x{WS_FLAGS + F_PREP * 128:x}")] + publish(sT0)
            s += ks(3)
    s += stamp(2)
    KB = 76
    VB = 96
    vEX = 120
    s += L(f"""
    s_lshl_b32 {sT0}, {sWV}, 5
    v_and_b32 v{vEX}, 31, {vLANE}
    v_add_u32 v{vEX}, {sT0}, v{vEX}
    v_mul_u32_u24 v{vEX}, 544, v{vEX}
    v_lshrrev_b32 v{vEX + 1}, 5, {vLANE}
    v_lshl_add_u32 v{vEX}, v{vEX + 1}, 7, v{vEX}
    v_add_u32 v{vEX}, 0x{L_EX:x}, v{vEX}
    v_mov_b32 v{VB + 10}, 0x3f80
    v_mov_b32 v{VB + 11}, 0
    v_mov_b32 v{VB + 22}, 0x3f80
    v_mov_b32 v{VB + 23}, 0
    s_barrier
    """)
    s += [I(f"v_cvt_pk_bf16_f32 v{KB + i}, v{KA + 2 * i}, v{KA + 2 * i + 1}") for i in range(20)]
    groups = []
    seen = set()
    for fi, (tq, p) in enumerate(PAIRS):
        c = vr(PK + 16 * tq, 16) if tq in seen else "0"
        seen.add(tq)
        groups.append([I(f"v_mfma_f32_32x32x16_bf16 {vr(PK + 16 * tq, 16)}, {ar(aWPH + 4 * fi, 4)}, {vr(KB + 4 * p, 4)}, {c}")])
    side = []
    for r4 in range(10, 20):
        a = KA + 4 * r4
        d = VB + 2 * (r4 - 10)
        off = [((P[h][r4] - 20) // 5 - h) * 128 + 80 + ((P[h][r4] - 20) % 5) * 8 for h in range(2)]
        side += [I(f"v_mul_f32 v{a + i}, v{a + i}, {vr(vRSTD)}") for i in range(4)]
        side += [I(f"v_cvt_pk_bf16_f32 v{d}, v{a}, v{a + 1}"), I(f"v_cvt_pk_bf16_f32 v{d + 1}, v{a + 2}, v{a + 3}")]
        if off[0] == off[1]:
            side.append(I(f"ds_write_b64 v{vEX}, v[{d}:{d + 1}] offset:{off[0]}"))
        else:
            side.append(I(f"v_mul_i32_i24 v{vEX + 2}, {off[1] - off[0]}, v{vEX + 1}"))
            side.append(I(f"v_add_u32 v{vEX + 2}, v{vEX + 2}, v{vEX}"))
            side.append(I(f"ds_write_b64 v{vEX + 2}, v[{d}:{d + 1}] offset:{off[0]}"))
    side += L(f"""
    ds_write_b64 v{vEX}, v[{VB + 22}:{VB + 23}] offset:120
    ds_write_b64 v{vEX}, v[{VB + 22}:{VB + 23}] offset:{256 + 120}
    """)
    body, rest = merge(groups, side, budget=24)
    s += body + rest
    for hs in range(2):
        s += softmax_pm(PK + 20 * hs, KA, KA + 20, KA + 40, True)
        for i in range(5):
            s.append(I(f"ds_write_b128 v{vEX}, v[{KA + 40 + 4 * i}:{KA + 43 + 4 * i}] offset:{hs * 256 + 16 * i}"))
    s += stamp(3)
    A0, A1 = 121, 122
    s += L(f"""
    v_lshrrev_b32 v{A0}, 5, {vLANE}
    v_bfe_u32 v{A1}, {vLANE}, 4, 1
    v_lshlrev_b32 v{A0}, 4, v{A0}
    v_lshl_add_u32 v{A0}, v{A1}, 2, v{A0}
    v_bfe_u32 v{A1}, {vLANE}, 2, 2
    v_add_u32 v{A0}, v{A0}, v{A1}
    v_mul_u32_u24 v{A0}, 544, v{A0}
    s_lshl_b32 {sT0}, {sWV}, 7
    s_add_u32 {sT0}, {sT0}, 0x{L_EX:x}
    v_add_u32 v{A0}, {sT0}, v{A0}
    v_and_b32 v{A1 + 1}, 3, {vLANE}
    v_lshl_add_u32 v{A1}, v{A1 + 1}, 3, v{A0}
    v_lshl_add_u32 v{A0}, v{A1 + 1}, 4, v{A0}
    s_waitcnt lgkmcnt(0)
    s_barrier
    """)
    FR = KA
    KVA = PK
    for stp in range(4):
        for fi, (b, o) in enumerate([(A0, 0), (A0, 8), (A1, 64), (A1, 80), (A1, 112)]):
            for e in range(2):
                d = FR + 20 * stp + 4 * fi + 2 * e
                s.append(I(f"ds_read_b64_tr_b16 v[{d}:{d + 1}], v{b} offset:{stp * 32 * 544 + e * 8 * 544 + o}"))
    s += L(f"""
    s_lshl_b32 {sT0}, {sG}, 2
    s_add_u32 {sT0}, {sT0}, {sWV}
    s_lshl_b32 {sT0}, {sT0}, 4
    s_add_u32 {sT0}, {sT0}, {sRB}
    s_lshl_b32 {sT0}, {sT0}, 11
    s_add_u32 {sT0}, {sT0}, 0x{WS_KVP:x}
    v_lshlrev_b32 v76, 4, {vLANE}
    v_lshrrev_b32 v77, 4, {vLANE}
    v_and_b32 v78, 15, {vLANE}
    v_lshl_add_u32 v77, v77, 3, v78           ; g*8 + n
    v_mov_b32 v79, 0x{OOB:x}
    v_cmp_gt_u32 vcc, 8, v78
    v_lshlrev_b32 v80, 4, v77
    v_lshlrev_b32 v81, 3, v77
    v_cndmask_b32 v80, v79, v80, vcc
    v_cndmask_b32 v81, v79, v81, vcc
    v_cmp_gt_u32 vcc, 32, {vLANE}
    v_lshlrev_b32 v82, 3, {vLANE}
    s_nop 0
    v_cndmask_b32 v81, v79, v81, vcc
    v_cndmask_b32 v82, v79, v82, vcc
    """)
    for stp in range(4):
        for td in range(2):
            for tf in range(3):
                d = KVA + 4 * (3 * td + tf)
                c = "0" if stp == 0 else vr(d, 4)
                s.append(I(f"v_mfma_f32_16x16x32_bf16 {vr(d, 4)}, {vr(FR + 20 * stp + 4 * tf, 4)}, {vr(FR + 20 * stp + 12 + 4 * td, 4)}, {c}"))
    O = 84
    for td in range(2):
        for tf in range(3):
            d = KVA + 4 * (3 * td + tf)
            o = O + 6 * td + 2 * tf
            s += [I(f"v_cvt_pk_bf16_f32 v{o}, v{d}, v{d + 1}"), I(f"v_cvt_pk_bf16_f32 v{o + 1}, v{d + 2}, v{d + 3}")]
    kst = L(f"""
    buffer_store_dwordx4 v[{O}:{O + 3}], v76, {SWS}, {sT0} offen sc1
    buffer_store_dwordx2 v[{O + 4}:{O + 5}], v82, {SWS}, {sT0} offen offset:1536 sc1
    buffer_store_dwordx4 v[{O + 6}:{O + 9}], v80, {SWS}, {sT0} offen offset:1024 sc1
    buffer_store_dwordx2 v[{O + 10}:{O + 11}], v81, {SWS}, {sT0} offen offset:1792 sc1
    """)
    s += kst
    s += stamp(4)
    S = Stream()
    idx = {}
    for t in range(2):
        for k in range(40):
            idx[(t, k)] = S.add(tr_unit(t, WSLOT[k >> 3], k & 7), mm(ACC[t], k, k == 0))
        idx[(t, "aug")] = S.add(*aug_frag(vAUG, 3 * 1024 + t * 512, ACC[t]))
    S.event(0, [WaitVM(WC[4]), I("s_barrier")])
    S.event(idx[(0, 24)], [WaitVM(kst), I("s_barrier")] + publish(sFL0))
    pro, groups = S.build()
    wi, wcK = w2_poll()
    s += wi + pro
    pf = []
    for n in range(10):
        pf += w2_loads(n)
    body, rest = merge(groups[:idx[(1, 0)]], wcK + pf[:36], start=6, budget=24)
    s += body + rest
    e0 = epi_act(ACC[0], "-1.0", sKS3, 0)
    e1 = epi_act(ACC[1], "-1.0", sKS3, 1)
    o = []
    rem = pf[36:]
    for i, x in enumerate(e0):
        o.append(x)
        if i % 4 == 3 and rem:
            o.append(rem.pop(0))
    o += rem
    body, rest = merge(groups[idx[(1, 0)]:], o, start=2, budget=28)
    s += body + rest
    s += e1
    st = out.emit(s, st)
    return st


def softmax_pm(p, ep, em, dst, scaled):
    T = 123
    MX, MN = 124, 126
    s = [I(f"v_max3_f32 v{MX}, v{p}, v{p + 1}, v{p + 2}"), I(f"v_min3_f32 v{MN}, v{p}, v{p + 1}, v{p + 2}")]
    for i in range(3, 19, 2):
        s += [I(f"v_max3_f32 v{MX}, v{MX}, v{p + i}, v{p + i + 1}"), I(f"v_min3_f32 v{MN}, v{MN}, v{p + i}, v{p + i + 1}")]
    s += [I(f"v_max_f32 v{MX}, v{MX}, v{p + 19}"), I(f"v_min_f32 v{MN}, v{MN}, v{p + 19}")]
    if scaled:
        s += [I(f"v_mul_f32 v{MX}, v{MX}, {vr(vC)}"), I(f"v_mul_f32 v{MN}, v{MN}, {vr(vC)}"), I(f"v_mov_b32 v{T - 1}, {vr(vC)}")]
        C = T - 1
        for i in range(0, 20, 2):
            s.append(I(f"v_pk_fma_f32 v[{em + i}:{em + i + 1}], v[{p + i}:{p + i + 1}], v[{C}:{C + 1}], v[{MN}:{MN + 1}] op_sel_hi:[1,0,0] neg_lo:[0,1,0] neg_hi:[0,1,0]"))
            s.append(I(f"v_pk_fma_f32 v[{ep + i}:{ep + i + 1}], v[{p + i}:{p + i + 1}], v[{C}:{C + 1}], v[{MX}:{MX + 1}] op_sel_hi:[1,0,0] neg_lo:[0,0,1] neg_hi:[0,0,1]"))
    else:
        for i in range(0, 20, 2):
            s.append(I(f"v_pk_add_f32 v[{em + i}:{em + i + 1}], v[{p + i}:{p + i + 1}], v[{MN}:{MN + 1}] op_sel_hi:[1,0] neg_lo:[1,0] neg_hi:[1,0]"))
            s.append(I(f"v_pk_add_f32 v[{ep + i}:{ep + i + 1}], v[{p + i}:{p + i + 1}], v[{MX}:{MX + 1}] op_sel_hi:[1,0] neg_lo:[0,1] neg_hi:[0,1]"))
    for i in range(20):
        s += [I(f"v_exp_f32 v{ep + i}, v{ep + i}"), I(f"v_exp_f32 v{em + i}, v{em + i}")]
    s += [I(f"v_pk_add_f32 v[{MX}:{MX + 1}], v[{ep}:{ep + 1}], v[{ep + 2}:{ep + 3}]"), I(f"v_pk_add_f32 v[{MN}:{MN + 1}], v[{em}:{em + 1}], v[{em + 2}:{em + 3}]")]
    for i in range(4, 20, 2):
        s += [I(f"v_pk_add_f32 v[{MX}:{MX + 1}], v[{MX}:{MX + 1}], v[{ep + i}:{ep + i + 1}]"), I(f"v_pk_add_f32 v[{MN}:{MN + 1}], v[{MN}:{MN + 1}], v[{em + i}:{em + i + 1}]")]
    s += [I(f"v_add_f32 v{MX}, v{MX}, v{MX + 1}"), I(f"v_add_f32 v{MN}, v{MN}, v{MN + 1}"),
          I(f"v_rcp_f32 v{MX}, v{MX}"), I(f"v_rcp_f32 v{MN}, v{MN}")]
    for i in range(0, 20, 2):
        s.append(I(f"v_pk_mul_f32 v[{ep + i}:{ep + i + 1}], v[{ep + i}:{ep + i + 1}], v[{MX}:{MX + 1}] op_sel_hi:[1,0]"))
        s.append(I(f"v_pk_mul_f32 v[{em + i}:{em + i + 1}], v[{em + i}:{em + i + 1}], v[{MN}:{MN + 1}] op_sel_hi:[1,0]"))
    for i in range(10):
        s.append(I(f"v_cvt_pk_bf16_f32 v{dst + i}, v{ep + 2 * i}, v{ep + 2 * i + 1}"))
    for i in range(10):
        s.append(I(f"v_cvt_pk_bf16_f32 v{dst + 10 + i}, v{em + 2 * i}, v{em + 2 * i + 1}"))
    return s


def tail(out, st, joinvm):
    s = [Label("Ljoin"), I("s_nop 7")]
    s += stamp(5)
    tNON, tFL, tWA, tWB = 252, 253, 254, 255
    s += [I(f"v_mov_b32 v{d}, v{r}") for d, r in ((tNON, vNON), (tFL, vFL), (tWA, vW2A), (tWB, vW2B))]
    vQP, vKP, vF2 = 22, 23, 24
    vROW, vA0, vA1, vT = 25, 26, 27, 28
    s += L(f"""
    s_mul_i32 {sK1}, {sHH}, 5
    s_lshr_b32 {sK1}, {sK1}, 1               ; c0
    s_lshr_b32 {sT0}, {sK1}, 3
    s_add_u32 {sT1}, {sK1}, 2
    s_lshr_b32 {sT1}, {sT1}, 3
    s_sub_u32 {sT1}, {sT1}, {sT0}
    s_lshl_b32 {sT2}, {sRC}, 5
    s_add_u32 {sT0}, {sT0}, {sT2}
    s_add_u32 {sT0}, {sT0}, {F_Q}
    v_and_b32 v{vT}, 1, {vLANE}
    v_mul_u32_u24 v{vT}, {sT1}, v{vT}
    v_bfe_u32 v{vT + 1}, {vLANE}, 1, 1
    v_lshl_add_u32 v{vT}, v{vT + 1}, 4, v{vT}
    v_add_u32 v{vT}, {sT0}, v{vT}
    v_lshlrev_b32 v{vT}, 7, v{vT}
    v_add_u32 v{vQP}, 0x{WS_FLAGS:x}, v{vT}
    """)
    s += poll_issue(vQP, vF)
    s += L(f"""
    s_lshr_b32 {sT0}, {sHH}, 2
    s_lshl_b32 {sT0}, {sT0}, 4
    s_add_u32 {sT0}, {sT0}, {F_KV}
    v_and_b32 v{vT}, 15, {vLANE}
    v_add_u32 v{vT}, {sT0}, v{vT}
    v_lshlrev_b32 v{vT}, 7, v{vT}
    v_add_u32 v{vKP}, 0x{WS_FLAGS:x}, v{vT}
    s_lshl_b32 {sT0}, {sRC}, 4
    s_lshl_b32 {sT1}, {sWV}, 2
    s_add_u32 {sT0}, {sT0}, {sT1}
    v_lshrrev_b32 v{vT}, 4, {vLANE}
    v_add_u32 v{vT}, {sT0}, v{vT}
    s_mov_b32 {sT0}, {RT}
    v_mul_lo_u32 v{vT}, v{vT}, {sT0}
    v_add_u32 v{vT}, 0x{WS_ACT:x}, v{vT}
    v_and_b32 v{vT + 1}, 15, {vLANE}
    v_lshl_add_u32 v{vROW}, v{vT + 1}, 4, v{vT}
    v_lshl_add_u32 v{vT + 3}, v{vT + 1}, 3, v{vT}
    """)
    s += L(f"""
    s_and_b32 {sT0}, {sHH}, 1
    s_mul_i32 {sT0}, {sT0}, 160
    s_sub_u32 {sT0}, 0x{L_OW + 160:x}, {sT0}
    v_bfe_u32 v{vT}, {vLANE}, 2, 2
    v_mul_u32_u24 v{vT}, 40, v{vT}
    v_bfe_u32 v{vT + 1}, {vLANE}, 4, 1
    v_bfe_u32 v{vT + 2}, {vLANE}, 1, 1
    v_lshl_add_u32 v{vT + 1}, v{vT + 1}, 1, v{vT + 2}   ; q
    v_lshl_add_u32 v{vT}, v{vT + 1}, 3, v{vT}
    v_add_u32 v{vT}, {sT0}, v{vT}
    v_lshrrev_b32 v{vT + 2}, 5, {vLANE}
    v_and_b32 v{vA1}, 1, {vLANE}
    v_xor_b32 v{vT + 2}, v{vT + 2}, v{vA1}
    v_cmp_eq_u32 vcc, 0, v{vT + 2}
    v_mov_b32 v{vA1}, 0x{L_ZERO:x}
    v_or_b32 v{vT + 2}, v{vT + 2}, v{vT + 1}
    v_cndmask_b32 v{vA0}, v{vA1}, v{vT}, vcc
    v_cmp_eq_u32 vcc, 0, v{vT + 2}
    v_add_u32 v{vT}, 32, v{vT}
    s_nop 0
    v_cndmask_b32 v{vA1}, v{vA1}, v{vT}, vcc
    """)
    for tp in range(2):
        for p in range(3):
            for e in range(2):
                s.append(I(f"ds_read_b64_tr_b16 {ar(12 * tp + 4 * p + 2 * e, 2)}, v{vA0 if tp == 0 else vA1} offset:{(8 * p + 4 * e) * 40}"))
    s += [WaitVM(joinvm), I("s_barrier")] + publish(sFLL)
    c1, b1 = poll_check(vQP, vF)
    s += c1
    s += L(f"""
    s_lshl_b32 {sT0}, {sK1}, 8
    s_add_u32 {sT0}, {sT0}, {76 * 1024}
    """)
    s += b1
    for p in range(3):
        s.append(I(f"buffer_load_dwordx4 v[{72 + 4 * p}:{75 + 4 * p}], v{vROW}, {SWS}, {sT0} offen offset:{256 * p} sc1"))
    s += poll_issue(vKP, vF2)
    for n in range(10, 14):
        s += w2_loads(n)
    vPL, vTW = 64, 65
    s += L(f"""
    s_lshl_b32 {sT0}, {sWV}, 5
    v_and_b32 v{vT}, 31, {vLANE}
    v_add_u32 v{vT}, {sT0}, v{vT}             ; ch
    v_lshrrev_b32 v{vT + 1}, 5, {vLANE}       ; hp
    v_lshlrev_b32 v{vPL}, 4, v{vT}
    v_lshl_add_u32 v{vPL}, v{vT + 1}, 14, v{vPL}
    s_lshl_b32 {sT1}, {sHH}, 15
    s_add_u32 {sT1}, {sT1}, 0x{WS_KVP:x}
    v_add_u32 v{vPL}, {sT1}, v{vPL}
    """)
    s += L(f"""
    v_and_b32 v{vT + 2}, 15, v{vT}
    v_lshrrev_b32 v66, 4, v{vT}
    v_mul_u32_u24 v{vT + 2}, 80, v{vT + 2}
    v_lshl_add_u32 v{vT + 2}, v66, 4, v{vT + 2}
    v_lshl_add_u32 v{vTW}, v{vT + 1}, 3, v{vT + 2}   ; A0 form
    v_and_b32 v{vT + 2}, 7, v{vT}
    v_bfe_u32 v66, v{vT}, 3, 2
    v_mul_u32_u24 v{vT + 2}, 80, v{vT + 2}
    v_lshl_add_u32 v{vT + 2}, v66, 4, v{vT + 2}
    v_lshl_add_u32 v{vT + 2}, v{vT + 1}, 3, v{vT + 2}
    v_add_u32 v{vT + 2}, 1280, v{vT + 2}             ; A1 form
    v_cmp_le_u32 vcc, 64, v{vT}
    v_and_b32 v66, 15, v{vT}
    v_lshl_add_u32 v66, v66, 1, v{vT + 1}            ; rho (0..31)
    v_cndmask_b32 v{vTW}, v{vTW}, v{vT + 2}, vcc
    v_and_b32 v67, 15, v66
    v_mul_u32_u24 v67, 80, v67
    v_lshrrev_b32 v68, 4, v66
    v_lshl_add_u32 v67, v68, 3, v67
    v_add_u32 v67, 64, v67                           ; B0 form
    v_cmp_le_u32 vcc, 96, v{vT}
    v_and_b32 v68, 7, v66
    v_mul_u32_u24 v68, 80, v68
    v_cndmask_b32 v{vTW}, v{vTW}, v67, vcc
    v_bfe_u32 v67, v66, 3, 1
    v_lshl_add_u32 v68, v67, 3, v68
    v_add_u32 v68, {1280 + 64}, v68                  ; B1 form
    v_cmp_le_u32 vcc, 112, v{vT}
    v_mov_b32 v67, 2560
    s_nop 0
    v_cndmask_b32 v{vTW}, v{vTW}, v68, vcc
    v_cmp_le_u32 vcc, 120, v{vT}
    s_nop 1
    v_cndmask_b32 v{vTW}, v{vTW}, v67, vcc
    """)
    s += L(f"""
    v_bfe_u32 v{vT}, {vLANE}, 3, 2
    v_and_b32 v{vT + 1}, 3, {vLANE}
    v_lshl_add_u32 v{vT}, v{vT}, 2, v{vT + 1}
    v_mul_u32_u24 v{vT}, 80, v{vT}
    v_bfe_u32 v{vT + 1}, {vLANE}, 2, 1
    v_lshrrev_b32 v{vT + 2}, 5, {vLANE}
    v_cmp_eq_u32 vcc, v{vT + 1}, v{vT + 2}
    v_mov_b32 v{vA1}, 0x{L_ZERO:x}
    v_add_u32 v{vT + 1}, 1280, v{vT}
    v_cndmask_b32 v{vA0}, v{vA1}, v{vT}, vcc
    v_cndmask_b32 v{vA1}, v{vA1}, v{vT + 1}, vcc
    """)
    for tp in range(2):
        for p in range(3):
            c = "0" if p == 0 else vr(84 + 16 * tp, 16)
            s.append(I(f"v_mfma_f32_32x32x16_bf16 {vr(84 + 16 * tp, 16)}, {ar(12 * tp + 4 * p, 4)}, {vr(72 + 4 * p, 4)}, {c}"))
    c1, b1 = poll_check(vKP, vF2)
    s += c1 + [I("s_nop 3")] + b1
    for i in range(8):
        if i % 2 == 0:
            s.append(lit(sT0, i * 2048))
        s.append(I(f"buffer_load_dwordx4 v[{32 + 4 * i}:{35 + 4 * i}], v{vPL}, {SWS}, {sT0} offen offset:{(i & 1) * 2048} sc1"))
    s += stamp(6)
    s += softmax_pm(84, 84, 104, 2, False)
    s += L(f"""
    s_mov_b32 {sT0}, 0x3f80
    s_mov_b32 {sT1}, 0x3f800000
    """)
    SM = 72
    for i in range(8):
        for r in range(4):
            for hf in range(2):
                c = "0" if i == 0 else f"v{SM + 2 * r + hf}"
                s.append(I(f"v_dot2_f32_bf16 v{SM + 2 * r + hf}, v{32 + 4 * i + r}, {sT0 if hf == 0 else sT1}, {c}"))
    for i in range(4):
        s.append(I(f"v_permlane32_swap_b32 v{SM + i}, v{SM + 4 + i}"))
    for i in range(4):
        s.append(I(f"v_add_f32 v{SM + i}, v{SM + i}, v{SM + 4 + i}"))
    s += L(f"""
    v_cvt_pk_bf16_f32 v{SM}, v{SM}, v{SM + 1}
    v_cvt_pk_bf16_f32 v{SM + 1}, v{SM + 2}, v{SM + 3}
    ds_write_b64 v{vTW}, v[{SM}:{SM + 1}]
    s_waitcnt lgkmcnt(0)
    s_barrier
    """)
    for p in range(5):
        for tp in range(2):
            s.append(I(f"ds_read_b128 {ar(24 + 20 * tp + 4 * p, 4)}, v{vA0 if tp == 0 else vA1} offset:{16 * p}"))
    vAC = [66, 67, 68, 69]
    s += L(f"""
    s_lshr_b32 {sT0}, {sR2}, 1
    s_lshl_b32 {sT0}, {sT0}, 5
    s_add_u32 {sT0}, {sT0}, {F_ACT}
    s_lshl_b32 {sT0}, {sT0}, 7
    s_add_u32 {sU0B}, {sT0}, 0x{WS_FLAGS:x}
    v_min_u32 v{vT}, 13, {vLANE}
    v_lshlrev_b32 v{vT}, 7, v{vT}
    v_add_u32 v{vQP}, {sU0B}, v{vT}
    """)
    s += poll_issue(vQP, vF2)
    for p in range(5):
        for tp in range(2):
            c = "0" if p == 0 else vr(84 + 16 * tp, 16)
            s.append(I(f"v_mfma_f32_32x32x16_bf16 {vr(84 + 16 * tp, 16)}, {ar(24 + 20 * tp + 4 * p, 4)}, {vr(2 + 4 * p, 4)}, {c}"))
    s += L(f"""
    s_lshr_b32 {sT0}, {sHH}, 1
    s_add_u32 {sT0}, {sT0}, 56
    s_lshl_b32 {sT0}, {sT0}, 10
    s_and_b32 {sT1}, {sHH}, 1
    s_lshl_b32 {sT2}, {sT1}, 9
    s_add_u32 {sT0}, {sT0}, {sT2}
    s_lshl_b32 {sT1}, {sT1}, 7
    s_lshr_b32 {sT2}, {sHH}, 1
    s_lshl_b32 {sT2}, {sT2}, 8
    s_add_u32 {sT1}, {sT1}, {sT2}
    s_add_u32 {sT1}, {sT1}, {72 * 1024}
    s_lshl_b32 {sT2}, {sRC}, 5
    s_add_u32 {sT2}, {sT2}, {sHH}
    s_add_u32 {sT2}, {sT2}, {F_O}
    s_lshl_b32 {sT2}, {sT2}, 7
    s_add_u32 {sFL0}, {sT2}, 0x{WS_FLAGS:x}
    v_add_f32 v104, 0x358637bd, v104
    v_rcp_f32 v104, v104
    v_mul_f32 v104, 0x{LOG2E:x}, v104
    """)
    for i in range(0, 20, 2):
        s.append(I(f"v_pk_mul_f32 v[{84 + i}:{85 + i}], v[{84 + i}:{85 + i}], v[104:105] op_sel_hi:[1,0]"))
    for i in range(10):
        s.append(I(f"v_cvt_pk_bf16_f32 v{2 + i}, v{84 + 2 * i}, v{85 + 2 * i}"))
    ost = L(f"""
    buffer_store_dwordx4 v[2:5], v{vROW}, {SWS}, {sT0} offen sc1
    buffer_store_dwordx4 v[6:9], v{vROW}, {SWS}, {sT0} offen offset:256 sc1
    buffer_store_dwordx2 v[10:11], v{vT + 3}, {SWS}, {sT1} offen sc1
    """)
    s += ost
    s += stamp(7)
    vAC = [12, 13, 14, 15]
    vAR = [16, 17, 18, 19]
    vXO = [25, 26, 27]
    s += L(f"""
    s_mul_i32 {sT0}, {sR2}, {4 * RT}
    s_lshl_b32 {sT1}, {sWV}, 10
    s_add_u32 {sT0}, {sT0}, {sT1}
    s_add_u32 {sT0}, {sT0}, 0x{WS_ACT:x}
    v_lshlrev_b32 v{vT}, 4, {vLANE}
    v_add_u32 v{vAC[0]}, {sT0}, v{vT}
    v_add_u32 v{vAC[1]}, {RT}, v{vAC[0]}
    v_add_u32 v{vAC[2]}, {2 * RT}, v{vAC[0]}
    v_add_u32 v{vAC[3]}, {3 * RT}, v{vAC[0]}
    """)
    c1, b1 = poll_check(vQP, vF2)
    s += c1 + [I("s_nop 3")] + b1
    ARING = [32 + 16 * i for i in range(6)]

    def act_loads(n):
        d = ARING[n % 6]
        if n < 18:
            return [lit(sT2, n * 4096)] + [I(f"buffer_load_dwordx4 v[{d + 4 * r}:{d + 4 * r + 3}], v{vAC[r]}, {SWS}, {sT2} offen sc1") for r in range(4)]
        o = []
        for r in range(4):
            o.append(I(f"buffer_load_dwordx2 v[{d + 4 * r}:{d + 4 * r + 1}], v{vAR[r]}, {SWS}, 0 offen sc1"))
            o.append(I(f"buffer_load_dwordx2 v[{d + 4 * r + 2}:{d + 4 * r + 3}], v{vAR[r]}, {SWS}, 0 offen offset:128 sc1"))
        return o
    for n in range(3):
        s += act_loads(n)
    s += [WaitVM(ost), I("s_barrier")] + publish(sFL0, tNON, tFL)
    for n in range(3, 5):
        s += act_loads(n)
    s += L(f"""
    s_add_u32 {sT0}, {sT0}, {72 * 1024}
    v_lshrrev_b32 v{vT}, 4, {vLANE}
    v_and_b32 v{vT + 1}, 15, {vLANE}
    v_lshlrev_b32 v{vT + 1}, 3, v{vT + 1}
    v_lshl_add_u32 v{vT}, v{vT}, 8, v{vT + 1}
    v_add_u32 v{vAR[0]}, {sT0}, v{vT}
    v_add_u32 v{vAR[1]}, {RT}, v{vAR[0]}
    v_add_u32 v{vAR[2]}, {2 * RT}, v{vAR[0]}
    v_add_u32 v{vAR[3]}, {3 * RT}, v{vAR[0]}
    """)
    vPB, vPC, vPD = 20, 21, 22
    s += L(f"""
    v_min_u32 v{vT}, 3, {vLANE}
    v_add_u32 v{vT}, 14, v{vT}
    v_lshlrev_b32 v{vT}, 7, v{vT}
    v_add_u32 v{vPB}, {sU0B}, v{vT}
    v_min_u32 v{vT}, 8, {vLANE}
    v_add_u32 v{vT}, 18, v{vT}
    v_lshlrev_b32 v{vT}, 7, v{vT}
    v_add_u32 v{vPC}, {sU0B}, v{vT}
    s_lshr_b32 {sT0}, {sR2}, 2
    s_lshl_b32 {sT0}, {sT0}, 5
    s_add_u32 {sT0}, {sT0}, {F_O}
    s_lshl_b32 {sT0}, {sT0}, 7
    s_add_u32 {sT0}, {sT0}, 0x{WS_FLAGS:x}
    v_and_b32 v{vT}, 31, {vLANE}
    v_lshlrev_b32 v{vT}, 7, v{vT}
    v_add_u32 v{vPD}, {sT0}, v{vT}
    """)
    vLR = [28, 29, 30]
    xo = L(f"""
    s_mul_i32 {sT0}, {sR2}, {64 * 1280}
    s_mul_i32 {sT1}, {sCG}, 160
    s_add_u32 {sT0}, {sT0}, {sT1}
    """)
    for i in range(3):
        xo += L(f"""
        v_add_u32 v2, {256 * i}, v0
        v_min_u32 v3, 639, v2
        v_mul_u32_u24 v4, 6554, v3
        v_lshrrev_b32 v4, 16, v4
        v_mul_u32_u24 v5, 10, v4
        v_sub_u32 v5, v3, v5
        v_mul_u32_u24 v6, 1280, v4
        v_lshl_add_u32 v6, v5, 4, v6
        v_add_u32 v{vXO[i]}, {sT0}, v6
        v_mul_u32_u24 v6, 336, v4
        v_lshl_add_u32 v{vLR[i]}, v5, 4, v6
        """)
        if i == 2:
            xo += L(f"""
            v_cmp_gt_u32 vcc, 640, v2
            v_mov_b32 v6, 0x{OOB:x}
            s_nop 0
            v_cndmask_b32 v{vXO[i]}, v6, v{vXO[i]}, vcc
            """)
    s += xo
    s += stamp(8)
    sides = {n: [] for n in range(19)}
    chk = {}
    def addpoll(n_issue, n_check, a):
        sides[n_issue] += poll_issue(a, vF2)
        c1, b1 = poll_check(a, vF2)
        chk[n_check] = (c1, b1)
    addpoll(0, 2, vPB)
    addpoll(3, 4, vPC)
    addpoll(11, 12, vPD)
    issue_at = {n: n - 5 for n in range(5, 14)}
    issue_at.update({14: 12, 15: 12, 16: 12, 17: 13, 18: 13})
    w2_at = {14: 1, 15: 2, 16: 3, 17: 4, 18: 5}
    for n in range(19):
        pre = []
        if n in chk:
            pre = chk[n][0] + [I("s_nop 3")] + chk[n][1]
        ld = []
        for m in range(5, 19):
            if issue_at[m] == n:
                ld += act_loads(m)
        for m in range(14, 19):
            if w2_at[m] == n:
                ld += w2_loads(m, sT3, tWA, tWB)
        if n == 14:
            ld += [I(f"buffer_load_dwordx4 v[{2 + 4 * i}:{5 + 4 * i}], v{vXO[i]}, {SX}, 0 offen") for i in range(2)]
            ld += [I(f"buffer_load_dwordx4 v[248:251], v{vXO[2]}, {SX}, 0 offen")]
        f, b = W2REG[n]
        d = ARING[n % 6]
        groups = []
        for r in range(4):
            for ct in range(5):
                a = 4 * (5 * r + ct)
                c = "0" if n == 0 else ar(a, 4)
                groups.append([I(f"v_mfma_f32_16x16x32_bf16 {ar(a, 4)}, {f}[{b + 4 * ct}:{b + 4 * ct + 3}], {vr(d + 4 * r, 4)}, {c}")])
        if n == 13:
            s += pre + sides[n] + ld
            st = out.emit(s, st)
            s = []
            probe = [I(f"v_mov_b32 v31, v{d + 15}")]
            st = out.emit(probe + [I(f"s_cmp_ge_u32 {sWV}, 2"), I("s_cbranch_scc1 Lskip13")], st)
            st = out.emit([g[0] for g in groups], st)
            st = out.emit([Label("Lskip13"), I("s_nop 1")], st)
            continue
        s += pre
        body, rest = merge(groups, sides[n] + ld, budget=8, start=1)
        s += body + rest
    s += stamp(9)
    WSZ = 64 * 336
    s += L(f"""
    v_and_b32 v12, 15, {vLANE}
    v_mul_u32_u24 v12, 336, v12
    v_lshrrev_b32 v13, 5, {vLANE}
    v_lshl_add_u32 v12, v13, 4, v12
    v_bfe_u32 v13, {vLANE}, 4, 1
    v_mul_u32_u24 v13, 160, v13
    s_mul_i32 {sT0}, {sWV}, {WSZ}
    v_add3_u32 v12, v12, v13, {sT0}
    """)
    for r in range(4):
        for ct in range(5):
            a = 4 * (5 * r + ct)
            s.append(I(f"ds_write_b128 v12, {ar(a, 4)} offset:{r * 16 * 336 + ct * 32}"))
    s += L("""
    s_waitcnt lgkmcnt(0)
    s_barrier
    """)
    for i in range(3):
        for w in range(4):
            for hf in range(2):
                d = 32 + 32 * i + 8 * w + 4 * hf
                off = w * WSZ + hf * 160
                if off < 65536:
                    s.append(I(f"ds_read_b128 v[{d}:{d + 3}], v{vLR[i]} offset:{off}"))
                else:
                    raise ValueError
    s += [lit(sT0, LN2)]
    XR = [2, 6, 248]
    for i in range(3):
        b = 32 + 32 * i
        for j in range(0, 8, 2):
            s.append(I(f"v_pk_add_f32 v[{b + j}:{b + j + 1}], v[{b + j}:{b + j + 1}], v[{b + 8 + j}:{b + 9 + j}]"))
            s.append(I(f"v_pk_add_f32 v[{b + 16 + j}:{b + 17 + j}], v[{b + 16 + j}:{b + 17 + j}], v[{b + 24 + j}:{b + 25 + j}]"))
        for j in range(0, 8, 2):
            s.append(I(f"v_pk_add_f32 v[{b + j}:{b + j + 1}], v[{b + j}:{b + j + 1}], v[{b + 16 + j}:{b + 17 + j}]"))
        for j in range(4):
            s.append(I(f"v_lshlrev_b32 v{b + 8 + 2 * j}, 16, v{XR[i] + j}"))
            s.append(I(f"v_and_b32 v{b + 9 + 2 * j}, 0xffff0000, v{XR[i] + j}"))
        for j in range(8):
            s.append(I(f"v_fma_f32 v{b + j}, v{b + j}, {sT0}, v{b + 8 + j}"))
        for j in range(4):
            s.append(I(f"v_cvt_pk_bf16_f32 v{b + 16 + j}, v{b + 2 * j}, v{b + 2 * j + 1}"))
        s.append(I(f"buffer_store_dwordx4 v[{b + 16}:{b + 19}], v{vXO[i]}, {SOUT}, 0 offen"))
    s += stamp(10)
    if OPT["stamps"]:
        s += L(f"""
        s_waitcnt vmcnt(0)
        """) + stamp(11) + L(f"""
        s_lshl_b32 {sT0}, s2, 8
        s_lshl_b32 {sT1}, {sWV}, 6
        s_add_u32 {sT0}, {sT0}, {sT1}
        s_add_u32 {sT0}, {sT0}, 0x{WS_DBG:x}
        v_cmp_eq_u32 vcc, 0, {vLANE}
        v_mov_b32 v3, 0x{OOB:x}
        v_mov_b32 v2, 0
        v_cndmask_b32 v2, v3, v2, vcc
        buffer_store_dwordx4 a[240:243], v2, {SWS}, {sT0} offen
        buffer_store_dwordx4 a[244:247], v2, {SWS}, {sT0} offen offset:16
        buffer_store_dwordx4 a[248:251], v2, {SWS}, {sT0} offen offset:32
        buffer_store_dwordx4 a[252:255], v2, {SWS}, {sT0} offen offset:48
        """)
    s += L(f"""
    s_cmp_lg_u32 s2, 0
    s_cbranch_scc1 Lend
    v_lshlrev_b32 v2, 7, v0
    v_add_u32 v2, 0x{WS_FLAGS + F_PREP * 128:x}, v2
    """)
    s += poll_issue(2, 3)
    c1, b1 = poll_check(2, 3)
    s += c1 + b1
    s += L(f"""
    v_cmp_eq_u32 vcc, 0, v0
    v_mov_b32 v2, 0x{OOB:x}
    v_mov_b32 v3, {sNON}
    s_barrier
    v_cndmask_b32 v2, v2, 0, vcc
    buffer_store_dword v3, v2, {SWS}, 0 offen sc1
    """)
    s += [Label("Lend"), I("s_endpgm")]
    st = out.emit(s, st)
    return st


def main():
    out = Out()
    st = State()
    e, cdma = entry()
    e += [I(f"s_cmp_ge_u32 {sY}, 16"), I("s_cbranch_scc1 LroleM")]
    st = out.emit(e, st)
    stM = st.copy()
    stK = role_KV(out, st, cdma)
    out.emit([I("s_branch Ljoin")], stK)
    sts = role_M(out, stM, cdma)
    j, pv = join_states([stK] + sts)
    tail(out, j, pv)
    hdr = open(os.path.join(os.path.dirname(os.path.abspath(__file__)), "..", "cdna_kernels", NAME + ".s.ref")).read().split("\n")
    head = [l for l in hdr if l.startswith(";") and "@launch" not in l]
    txt = "\n".join(head) + f"\n; @launch grid=(256,1,1) block=(256,1,1) lds={LDS_SIZE}\n"
    txt += f""".amdgcn_target "amdgcn-amd-amdhsa--gfx950"
.text
.globl {NAME}_kernel
.p2align 8
.type {NAME}_kernel,@function
{NAME}_kernel:
"""
    txt += out.text()
    txt += "\n".join(slow_paths) + "\n"
    txt += f""".section .rodata,"a"
.p2align 6
.amdhsa_kernel {NAME}_kernel
  .amdhsa_next_free_vgpr 512
  .amdhsa_next_free_sgpr 102
  .amdhsa_accum_offset 256
  .amdhsa_group_segment_fixed_size 0
  .amdhsa_kernarg_size 88
  .amdhsa_user_sgpr_count 2
  .amdhsa_user_sgpr_kernarg_segment_ptr 1
  .amdhsa_system_sgpr_workgroup_id_x 1
.end_amdhsa_kernel
"""
    dst = sys.argv[1] if len(sys.argv) > 1 else "cdna_kernels/" + NAME + ".s"
    open(dst, "w").write(txt)
    print(f"wrote {dst}: {out.count} instrs, {out.nops} nops, {out.waits} waits")


main()
```

```python
import sys, os
sys.path.insert(0, os.path.dirname(os.path.abspath(__file__)))
from asm import *

NAME = "parallel_sum__linear_kernel_hedgehog__dense_activation_mish__prompt"
OPT = dict(stamps=False, spin=20000, probe=-1, probewg=0)
for a in sys.argv[2:]:
    k, v = a.split("=")
    OPT[k] = int(v)

WS_FLAGS = 0x10000
WS_STATS = 0x40000
WS_COLS = 0x50000
WS_KVP = 0x100000
WS_W2F = 0x200000
WS_ACT = 0x500000
WS_DBG = 0x1100000
WS_SIZE = 0x1200000
RT = 96 * 1024
F_PREP, F_W2, F_ACT, F_Q, F_KV, F_O = 0, 256, 384, 896, 1152, 1280
OOB = 0x80000000
LOG2E = 0x3FB8AA3B
LN2 = 0x3F317218
LDS_SIZE = 163840
L_CB_M = 131072
L_KR = 65536
L_CB_KV = L_KR + 3 * 20480
L_EX = 81920
L_WPH = 151552
L_OW = 155648
L_ZERO = 156672
L_AUG = 159744
SX, SWQ, SW1, SWS, SOUT, SU1, SU3, SB1, SPH, SR = ["s[%d:%d]" % (i, i + 3) for i in range(28, 68, 4)]
sWV, sRB, sG, sLQ, sNON, sT0, sT1, sT2, sT3, sK1, sU1CS, sU1B, sU0B, sU2B, sU3B = ["s%d" % i for i in range(68, 83)]
sKS0, sKS1, sKS2, sKS3, sFL0, sFL1, sFL2, sFL3, sMI, sONE, sHH, sRC, sR2, sCG, sSPIN, sFLL = ["s%d" % i for i in range(83, 99)]
sX, sY = "s26", "s27"
sM0, sM1, sM2 = "s[8:9]", "s[12:13]", "s[14:15]"
vLANE = "v1"
vXD = [2, 3, 4, 5]
vXR = [[6, 7, 8, 9], [10, 11, 12, 13]]
vW1 = [14, 15, 16, 17]
vWQ = [18, 19, 20, 21]
vU1 = [22, 23, 24, 25]
vKD = [18, 19, 20, 21, 22]
vTA = [[26, 27], [28, 29]]
vAUG, vST, vFL, vC, vRSTD, vF = 30, 31, 32, 33, 34, 35
vBAUG = 36
RING = [40, 44, 48, 52]
vNON, vPA, vW2A, vW2B = 56, 57, 58, 59
ACC = [60, 76, 92]
TMP = 108
KA, PK = 128, 208
vKT = [[60, 61, 62, 63, 64], [65, 66, 67, 68, 69]]
vKAUG = [70, 71, 72, 73, 74]
aWPH = 160

HEADS = [[0, 2], [1, 3]]


def piece_tables():
    k = lambda h, s: 5 * h + s
    v = lambda h, s: 20 + 5 * h + s
    def pick(lst, residues):
        out = []
        for r in residues:
            c = [p for p in lst if p % 8 == r][0]
            lst.remove(c)
            out.append(c)
        return out
    k0 = [k(0, s) for s in range(5)]; k1 = [k(1, s) for s in range(5)]
    k2 = [k(2, s) for s in range(5)]; k3 = [k(3, s) for s in range(5)]
    va = [v(0, s) for s in range(5)] + [v(2, s) for s in range(5)]
    vb = [v(1, s) for s in range(5)] + [v(3, s) for s in range(5)]
    h0 = pick(k0, [1, 2, 3, 4]) + pick(k0, [0]) + pick(k2, [4, 5, 6]) + pick(k2, [2, 3]) + pick(va, [6, 7]) + pick(va, [0, 1, 2, 4]) + pick(va, [5, 0, 6, 7])
    h1 = pick(k1, [5, 6, 7, 0]) + pick(k1, [1]) + pick(k3, [7, 2, 3]) + pick(k3, [0, 1]) + pick(vb, [4, 5]) + pick(vb, [3, 5, 6, 7]) + pick(vb, [1, 2, 3, 4])
    for t in range(5):
        assert len({p % 8 for p in h0[4 * t:4 * t + 4] + h1[4 * t:4 * t + 4]}) == 8
    return [h0, h1]


P = piece_tables()

slow_paths = []
_uid = [0]


def uid():
    _uid[0] += 1
    return _uid[0]


def vr(a, n=1):
    return f"v{a}" if n == 1 else f"v[{a}:{a + n - 1}]"


def ar(a, n=1):
    return f"a{a}" if n == 1 else f"a[{a}:{a + n - 1}]"


nstamp = [0]


def stamp(i):
    if not OPT["stamps"]:
        return []
    r = [I(f"s_memrealtime s[100:101]"), I("s_waitcnt lgkmcnt(0)"), I(f"v_accvgpr_write_b32 a{240 + i}, s100")]
    if i in (0, 11):
        r += [I(f"s_memtime s[100:101]"), I("s_waitcnt lgkmcnt(0)"), I(f"v_accvgpr_write_b32 a{254 + (i == 11)}, s100")]
    return r


def lit(s, val):
    return I(f"s_mov_b32 {s}, 0x{val & 0xffffffff:x}")


def poll_issue(addr=vPA, dst=vF):
    return [I(f"buffer_load_dword {vr(dst)}, {vr(addr)}, {SWS}, 0 offen sc1")]


def poll_check(addr=vPA, dst=vF):
    n = uid()
    slow_paths.append(f"""Lslow{n}:
    s_mov_b32 {sSPIN}, 0
Lspin{n}:
    s_add_u32 {sSPIN}, {sSPIN}, 1
    s_cmp_gt_u32 {sSPIN}, {OPT['spin']}
    s_cbranch_scc1 Lout{n}
    buffer_load_dword {vr(dst)}, {vr(addr)}, {SWS}, 0 offen sc1
    s_waitcnt vmcnt(0)
    v_cmp_ne_u32 vcc, {sNON}, {vr(dst)}
    s_nop 4
    s_cbranch_vccnz Lspin{n}
Lout{n}:
    s_nop 7
    s_branch Lback{n}""")
    return [I(f"v_cmp_ne_u32 vcc, {sNON}, {vr(dst)}")], [I(f"s_cbranch_vccnz Lslow{n}"), Label(f"Lback{n}")]


def publish(soff, non=vNON, fl=vFL):
    return [I(f"buffer_store_dword {vr(non)}, {vr(fl)}, {SWS}, {soff} offen sc1")]


def dma4(srd, voffs, soff, ldsbase):
    out = [I(f"s_add_u32 m0, {sLQ}, 0x{ldsbase:x}")]
    for n in range(4):
        out.append(I(f"buffer_load_dwordx4 {vr(voffs[n])}, {srd}, {soff} offen" + (f" offset:{n * 1024}" if n else "") + " lds"))
    return out


def vmops(lst):
    return [i for i in lst if i.kind == "vm"]


def entry():
    s = L(f"""
    s_cmp_ge_u32 s2, 256
    s_cbranch_scc1 Lend
    s_load_dwordx16 s[4:19], s[0:1], 0
    s_load_dwordx4 s[20:23], s[0:1], 64
    s_load_dwordx2 s[24:25], s[0:1], 80
    v_lshrrev_b32 v2, 6, v0
    v_and_b32 {vLANE}, 63, v0
    v_readfirstlane_b32 {sWV}, v2
    s_and_b32 {sX}, s2, 7
    s_lshr_b32 {sY}, s2, 3
    s_and_b32 {sT0}, {sX}, 1
    s_lshl_b32 {sT0}, {sT0}, 3
    s_and_b32 {sT1}, {sY}, 7
    s_add_u32 {sRB}, {sT0}, {sT1}
    s_and_b32 {sT0}, {sX}, 6
    s_bfe_u32 {sT1}, {sY}, 0x10003
    s_add_u32 {sG}, {sT0}, {sT1}
    s_lshl_b32 {sLQ}, {sWV}, 12
    s_mov_b32 {sONE}, 0x3f803f80
    s_lshl_b32 {sT0}, {sX}, 2
    s_and_b32 {sT1}, {sY}, 3
    s_add_u32 {sHH}, {sT0}, {sT1}
    s_lshr_b32 {sRC}, {sY}, 2
    s_and_b32 {sT0}, {sX}, 6
    s_lshl_b32 {sT0}, {sT0}, 2
    s_and_b32 {sT1}, {sY}, 7
    s_add_u32 {sR2}, {sT0}, {sT1}
    s_and_b32 {sT0}, {sX}, 1
    s_lshl_b32 {sT0}, {sT0}, 2
    s_lshr_b32 {sT1}, {sY}, 3
    s_add_u32 {sCG}, {sT0}, {sT1}
    """)
    if OPT["stamps"]:
        s += [I(f"v_accvgpr_write_b32 a{240 + i}, 0") for i in range(16)] + stamp(0)
    s += [I("s_waitcnt lgkmcnt(0)")]
    def srd(name, lo, size):
        b = int(name[2:name.index(":")])
        return L(f"""
        s_mov_b32 s{b}, s{lo}
        s_and_b32 s{b + 1}, s{lo + 1}, 0xffff
        s_mov_b32 s{b + 2}, 0x{size:x}
        s_mov_b32 s{b + 3}, 0x20000""")
    s += srd(SWS, 24, WS_SIZE) + srd(SX, 4, 2621440)
    s += L(f"""
    v_mov_b32 v128, 0
    v_lshrrev_b32 v129, 5, v0
    s_lshl_b32 {sT0}, s2, 3
    v_add_u32 v129, {sT0}, v129
    v_mul_u32_u24 v130, 1280, v129
    v_and_b32 v131, 31, v0
    v_lshl_add_u32 v130, v131, 4, v130
    buffer_load_dword v128, v128, {SWS}, 0 offen sc1
    v_cmp_gt_u32 vcc, 16, v131
    v_mov_b32 v132, 0x{OOB:x}
    buffer_load_dwordx4 v[136:139], v130, {SX}, 0 offen
    buffer_load_dwordx4 v[140:143], v130, {SX}, 0 offen offset:512
    v_cndmask_b32 v132, v132, v130, vcc
    buffer_load_dwordx4 v[144:147], v132, {SX}, 0 offen offset:1024
    """)
    s += srd(SWQ, 6, 2457600) + srd(SW1, 14, 2211840)
    b = int(SR[2:SR.index(":")])
    s += L(f"""
    s_lshr_b32 {sT0}, s2, 2
    s_cmp_lt_u32 {sT0}, 30
    s_cselect_b32 s{b}, s6, s14
    s_cselect_b32 s{b + 1}, s7, s15
    s_cselect_b32 s{b + 2}, 2457600, 2211840
    s_cselect_b32 {sT1}, 3840, 3456
    s_cselect_b32 {sT2}, 0, 30
    s_and_b32 s{b + 1}, s{b + 1}, 0xffff
    s_mov_b32 s{b + 3}, 0x20000
    s_sub_u32 {sT2}, {sT0}, {sT2}
    s_lshl_b32 {sT2}, {sT2}, 7
    s_cmp_lt_u32 s2, 228
    s_cselect_b32 s{b + 2}, s{b + 2}, 0
    s_and_b32 {sT3}, s2, 3
    s_mul_i32 {sT3}, {sT3}, 160
    s_mul_i32 {sK1}, {sWV}, 40
    s_add_u32 {sT3}, {sT3}, {sK1}
    v_lshrrev_b32 v133, 3, {vLANE}
    v_bfe_u32 v134, {vLANE}, 4, 1
    v_lshlrev_b32 v134, 2, v134
    v_and_b32 v135, 7, {vLANE}
    v_xor_b32 v134, v134, v135
    v_lshlrev_b32 v134, 4, v134
    v_add_u32 v135, {sT3}, v133
    v_mul_lo_u32 v135, v135, {sT1}
    v_add_u32 v135, v135, v134
    s_lshl_b32 {sT1}, {sT1}, 3
    s_mul_i32 {sT3}, {sWV}, 5120
    s_cmp_lt_u32 {sY}, 16
    s_cselect_b32 {sK1}, 0x{L_CB_KV:x}, 0x{L_CB_M:x}
    s_add_u32 {sT3}, {sT3}, {sK1}
    s_mov_b32 {sMI}, {sK1}
    """)
    cdma = []
    for n in range(5):
        s.append(I(f"s_add_u32 m0, {sT3}, {n * 1024}"))
        if n:
            s.append(I(f"s_add_u32 {sT2}, {sT2}, {sT1}"))
        d = I(f"buffer_load_dwordx4 v135, {SR}, {sT2} offen lds")
        cdma.append(d)
        s.append(d)
    s += L(f"""
    s_lshl_b32 {sT0}, {sRB}, 7
    s_lshl_b32 {sT1}, {sWV}, 5
    s_add_u32 {sT0}, {sT0}, {sT1}
    v_add_u32 v148, {sT0}, v133
    v_mul_u32_u24 v148, 1280, v148
    v_lshrrev_b32 v149, 4, {vLANE}
    v_and_b32 v150, 7, {vLANE}
    v_xor_b32 v149, v149, v150
    v_xor_b32 v150, 4, v149
    v_lshl_add_u32 {vr(vXD[0])}, v149, 4, v148
    v_lshl_add_u32 {vr(vXD[1])}, v150, 4, v148
    v_add_u32 {vr(vXD[2])}, {2 * (8 * 1280 - 1024)}, {vr(vXD[0])}
    v_add_u32 {vr(vXD[3])}, {3 * (8 * 1280 - 1024)}, {vr(vXD[1])}
    v_add_u32 {vr(vXD[1])}, {1 * (8 * 1280 - 1024)}, {vr(vXD[1])}
    """)
    return s, cdma


def xs_load(stage, ldsbase):
    return [lit(sT0, stage * 128)] + dma4(SX, vXD, sT0, ldsbase)


def w_offsets(dst, stride):
    s = L(f"""
    s_lshl_b32 {sT0}, {sWV}, 5
    v_add_u32 v151, {sT0}, v133""")
    if isinstance(stride, int):
        s += L(f"""
        v_mul_u32_u24 v151, {stride}, v151
        v_add_u32 {vr(dst[0])}, v151, v134""")
        for n in range(1, 4):
            s.append(I(f"v_add_u32 {vr(dst[n])}, {n * (8 * stride - 1024)}, {vr(dst[0])}"))
    else:
        s += L(f"""
        v_mul_lo_u32 v151, v151, {stride}
        s_lshl_b32 {sT0}, {stride}, 3
        s_sub_u32 {sT0}, {sT0}, 1024
        v_add_u32 {vr(dst[0])}, v151, v134""")
        for n in range(1, 4):
            s.append(I(f"v_add_u32 {vr(dst[n])}, {sT0}, {vr(dst[n - 1])}"))
    return s


def common_setup():
    def srd(name, lo, size):
        b = int(name[2:name.index(":")])
        return L(f"""
        s_mov_b32 s{b}, s{lo}
        s_and_b32 s{b + 1}, s{lo + 1}, 0xffff
        s_mov_b32 s{b + 2}, 0x{size:x}
        s_mov_b32 s{b + 3}, 0x20000""")
    s = srd(SOUT, 20, 2621440) + srd(SB1, 16, 3456) + srd(SPH, 8, 25600)
    s += w_offsets(vW1, 3456)
    s += L(f"""
    v_and_b32 v148, 31, {vLANE}
    v_bfe_u32 v149, {vLANE}, 1, 3
    v_lshrrev_b32 v150, 5, {vLANE}
    v_xor_b32 v149, v149, v150
    v_lshlrev_b32 v151, 7, v148
    v_add_u32 v151, {sLQ}, v151
    """)
    for k in range(4):
        s += L(f"""
        v_xor_b32 v152, {2 * k}, v149
        v_lshl_add_u32 {vr(vXR[0][k])}, v152, 4, v151
        v_add_u32 {vr(vXR[1][k])}, 0x10000, {vr(vXR[0][k])}""")
    s += L(f"""
    v_bfe_u32 v152, {vLANE}, 4, 1
    v_bfe_u32 v153, {vLANE}, 1, 1
    v_lshl_add_u32 v152, v152, 1, v153       ; q = 2gi + (c>>1)
    v_and_b32 v153, 1, {vLANE}               ; h'
    v_lshrrev_b32 v154, 1, v152              ; q>>1
    v_lshl_add_u32 v154, v153, 1, v154       ; col4>>1 = 2h' + (q>>1)
    v_bfe_u32 v155, {vLANE}, 3, 1            ; (r>>1)&1
    v_lshlrev_b32 v155, 2, v155
    v_xor_b32 v154, v154, v155
    v_and_b32 v152, 1, v152                  ; col4&1 = q&1
    v_lshlrev_b32 v152, 3, v152
    v_bfe_u32 v155, {vLANE}, 2, 2            ; r
    v_lshl_add_u32 v155, v150, 3, v155       ; k = 8hk + r
    v_lshl_add_u32 v152, v155, 7, v152
    v_lshl_add_u32 {vr(vTA[0][0])}, v154, 4, v152
    v_xor_b32 {vr(vTA[1][0])}, 64, {vr(vTA[0][0])}
    v_add_u32 {vr(vTA[0][1])}, 0x10000, {vr(vTA[0][0])}
    v_add_u32 {vr(vTA[1][1])}, 0x10000, {vr(vTA[1][0])}
    """)
    s += L(f"""
    v_bfe_u32 v152, {vLANE}, 2, 1
    v_bfe_u32 v153, {vLANE}, 3, 2
    v_and_b32 v154, 3, {vLANE}
    v_lshl_add_u32 v154, v153, 2, v154
    v_lshl_add_u32 v154, v152, 4, v154
    v_lshlrev_b32 v154, 4, v154
    v_add_u32 {vr(vAUG)}, 0x{L_AUG:x}, v154
    """)
    s += L(f"""
    s_lshl_b32 {sT0}, {sRB}, 3
    s_lshl_b32 {sT1}, {sWV}, 1
    s_add_u32 {sT0}, {sT0}, {sT1}
    v_bfe_u32 v152, {vLANE}, 4, 1
    v_add_u32 v152, {sT0}, v152
    s_mov_b32 {sT0}, {RT}
    v_mul_lo_u32 v152, v152, {sT0}
    v_and_b32 v153, 15, {vLANE}
    v_lshlrev_b32 v153, 4, v153
    v_lshl_add_u32 v153, v150, 9, v153
    v_add_u32 v152, v152, v153
    v_add_u32 {vr(vST)}, 0x{WS_ACT:x}, v152
    v_cmp_eq_u32 vcc, 0, v0
    v_mov_b32 v152, 0x{OOB:x}
    v_cndmask_b32 {vr(vFL)}, v152, 0, vcc
    """)
    s += L(f"""
    s_mul_i32 {sT0}, {sCG}, {76 * 5120}
    s_mul_i32 {sT1}, {sWV}, 5120
    s_add_u32 {sT0}, {sT0}, {sT1}
    s_add_u32 {sT0}, {sT0}, 0x{WS_W2F:x}
    v_lshlrev_b32 v152, 4, {vLANE}
    v_add_u32 {vr(vW2A)}, {sT0}, v152
    v_add_u32 {vr(vW2B)}, 4096, {vr(vW2A)}
    """)
    return s


def small_dmas():
    s = L(f"""
    s_mul_i32 {sT0}, {sHH}, 800
    v_subrev_u32 v152, 10, {vLANE}
    v_cmp_gt_u32 vcc, 50, v152
    v_lshlrev_b32 v152, 4, v152
    v_mov_b32 v153, 0x{OOB:x}
    s_mov_b32 m0, 0x{L_OW:x}
    v_cndmask_b32 v152, v153, v152, vcc
    buffer_load_dwordx4 v152, {SPH}, {sT0} offen lds
    s_mov_b32 m0, 0x{L_ZERO:x}
    s_nop 0
    buffer_load_dwordx4 v153, {SPH}, 0 offen lds
    """)
    return s


def stats_compute():
    s = L(f"""
    v_mov_b32 v156, 0
    v_mov_b32 v157, 0
    """)
    for i in range(12):
        s.append(I(f"v_dot2_f32_bf16 v156, v{136 + i}, {sONE}, v156"))
        s.append(I(f"v_dot2_f32_bf16 v157, v{136 + i}, v{136 + i}, v157"))
    s += L(f"""
    v_readfirstlane_b32 {sNON}, v128
    s_add_u32 {sNON}, {sNON}, 0x9e3779b1
    v_mov_b32 {vr(vNON)}, {sNON}
    """)
    for m in ("quad_perm:[1,0,3,2]", "quad_perm:[2,3,0,1]", "row_half_mirror", "row_mirror"):
        s.append(I(f"v_add_f32_dpp v156, v156, v156 {m} row_mask:0xf bank_mask:0xf"))
        s.append(I(f"v_add_f32_dpp v157, v157, v157 {m} row_mask:0xf bank_mask:0xf"))
    s += L(f"""
    v_mov_b32 v158, v156
    v_mov_b32 v159, v157
    v_permlane16_swap_b32 v156, v158
    v_permlane16_swap_b32 v157, v159
    v_add_f32 v156, v156, v158
    v_add_f32 v157, v157, v159
    v_mul_f32 v156, 0xbacccccd, v156         ; -mean
    v_mul_f32 v157, 0x3acccccd, v157         ; E[x^2]
    v_fma_f32 v157, -v156, v156, v157
    v_max_f32 v157, 0, v157
    v_add_f32 v157, 0x3727c5ac, v157         ; + 1e-5
    v_rsq_f32 v141, v157
    v_cvt_pk_bf16_f32 v136, v156, v156
    v_mul_f32 v157, v157, v141               ; std
    v_lshlrev_b32 v158, 16, v136
    v_sub_f32 v158, v156, v158
    v_cvt_pk_bf16_f32 v137, v158, v157
    v_and_b32 v159, 0xffff0000, v137
    v_sub_f32 v159, v157, v159
    v_cvt_pk_bf16_f32 v138, v159, 0
    v_mov_b32 v139, 0
    v_mul_f32 v140, 0x{LOG2E:x}, v141
    v_mov_b32 v142, 0
    v_mov_b32 v143, 0
    v_cmp_eq_u32 vcc, 0, v131
    v_lshlrev_b32 v129, 5, v129
    v_add_u32 v129, 0x{WS_STATS:x}, v129
    v_mov_b32 v158, 0x{OOB:x}
    v_cndmask_b32 v129, v158, v129, vcc
    buffer_store_dwordx4 v[136:139], v129, {SWS}, 0 offen sc1
    buffer_store_dwordx4 v[140:143], v129, {SWS}, 0 offen offset:16 sc1
    """)
    return s


def colsum_compute(cdma):
    s = [WaitVM(cdma), I("s_barrier")]
    s += L(f"""
    s_and_b32 {sT0}, {sWV}, 1
    s_lshr_b32 {sT1}, {sWV}, 1
    s_mul_i32 {sT2}, {sT1}, {80 * 128}
    s_add_u32 {sT2}, {sT2}, {sMI}
    s_lshl_b32 {sT3}, {sT0}, 2
    v_bfe_u32 v160, {vLANE}, 4, 1
    v_bfe_u32 v161, {vLANE}, 1, 1
    v_lshl_add_u32 v160, v160, 1, v161
    v_bfe_u32 v161, {vLANE}, 3, 1
    v_lshlrev_b32 v161, 2, v161
    v_xor_b32 v160, v160, v161
    v_xor_b32 v160, {sT3}, v160
    v_and_b32 v161, 1, {vLANE}
    v_lshlrev_b32 v161, 3, v161
    v_lshl_add_u32 v160, v160, 4, v161
    v_bfe_u32 v161, {vLANE}, 2, 2
    v_lshrrev_b32 v162, 5, {vLANE}
    v_lshl_add_u32 v161, v162, 3, v161
    v_lshl_add_u32 v160, v161, 7, v160
    v_add_u32 v160, {sT2}, v160
    """)
    for st in range(5):
        for e in range(2):
            s.append(I(f"ds_read_b64_tr_b16 v[{164 + 4 * st + 2 * e}:{165 + 4 * st + 2 * e}], v160 offset:{st * 2048 + e * 512}"))
    s += L(f"""
    v_mov_b32 v184, {sONE}
    v_mov_b32 v185, {sONE}
    v_mov_b32 v186, {sONE}
    v_mov_b32 v187, {sONE}
    s_and_b32 {sT2}, s2, 3
    s_lshl_b32 {sT2}, {sT2}, 1
    s_add_u32 {sT2}, {sT2}, {sT1}
    s_lshl_b32 {sT2}, {sT2}, 14
    s_lshr_b32 {sT3}, s2, 2
    s_lshl_b32 {sT3}, {sT3}, 8
    s_add_u32 {sT2}, {sT2}, {sT3}
    s_lshl_b32 {sT0}, {sT0}, 7
    s_add_u32 {sT2}, {sT2}, {sT0}
    s_add_u32 {sT2}, {sT2}, 0x{WS_COLS:x}
    s_cmp_lt_u32 s2, 228
    s_cselect_b32 {sT3}, 32, 0
    v_cmp_gt_u32 vcc, {sT3}, {vLANE}
    v_lshlrev_b32 v161, 2, {vLANE}
    v_mov_b32 v162, 0x{OOB:x}
    v_cndmask_b32 v161, v162, v161, vcc
    """)
    for st in range(5):
        c = "0" if st == 0 else "v[188:203]"
        s.append(I(f"v_mfma_f32_32x32x16_bf16 v[188:203], v[184:187], v[{164 + 4 * st}:{167 + 4 * st}], {c}"))
    s.append(I(f"buffer_store_dword v188, v161, {SWS}, {sT2} offen sc1"))
    return s


def prep_poll_addr(role):
    if role == "M":
        s = L(f"""
        s_cmp_eq_u32 {sWV}, 1
        s_cselect_b32 {sT0}, {sU1B}, {sU0B}
        s_cselect_b32 {sT1}, {sKS1}, {sKS0}
        s_cmp_eq_u32 {sWV}, 2
        s_cselect_b32 {sT1}, {sKS2}, {sT1}
        s_cmp_eq_u32 {sWV}, 3
        s_cselect_b32 {sT1}, {sKS3}, {sT1}
        s_lshr_b32 {sT1}, {sT1}, 11
        s_sub_u32 {sT2}, {sT1}, 38
        s_add_u32 {sT3}, {sT1}, 30
        s_cmp_ge_u32 {sT1}, 38
        s_cselect_b32 {sT0}, {sT2}, {sT3}
        v_mov_b32 v{TMP}, {sT0}
        v_lshlrev_b32 v{TMP + 2}, 6, v{TMP}
        v_add_u32 v{TMP + 2}, v{TMP + 2}, {vLANE}
        """)
    else:
        s = L(f"""
        s_mul_i32 {sT0}, {sG}, 80
        s_lshr_b32 {sT1}, {sT0}, 6
        s_add_u32 {sT1}, {sT1}, 10
        s_add_u32 {sT2}, {sG}, 49
        v_subrev_u32 v{TMP}, 4, {vLANE}
        v_bfe_u32 v{TMP + 1}, v{TMP}, 2, 1
        v_bfe_u32 v{TMP + 2}, v{TMP}, 3, 1
        v_mul_u32_u24 v{TMP + 2}, 10, v{TMP + 2}
        v_add3_u32 v{TMP + 1}, v{TMP + 1}, v{TMP + 2}, {sT1}
        v_cmp_gt_u32 vcc, 16, v{TMP}
        v_mov_b32 v{TMP + 2}, {sT2}
        v_cndmask_b32 v{TMP}, v{TMP + 2}, v{TMP + 1}, vcc
        s_add_u32 {sT0}, {sT0}, 640
        v_min_u32 v{TMP + 1}, 159, v0
        v_cmp_le_u32 vcc, 80, v{TMP + 1}
        v_add_u32 v{TMP + 1}, {sT0}, v{TMP + 1}
        v_add_u32 v{TMP + 3}, 560, v{TMP + 1}
        v_cndmask_b32 v{TMP + 1}, v{TMP + 1}, v{TMP + 3}, vcc
        s_lshl_b32 {sT2}, {sT2}, 6
        v_add_u32 v{TMP + 3}, {sT2}, {vLANE}
        v_cmp_le_u32 vcc, 192, v0
        s_nop 1
        v_cndmask_b32 v{TMP + 2}, v{TMP + 1}, v{TMP + 3}, vcc
        """)
    s += L(f"""
    v_and_b32 v{TMP + 1}, 3, {vLANE}
    v_lshl_add_u32 v{TMP}, v{TMP}, 2, v{TMP + 1}
    s_lshl_b32 {sT0}, {sRB}, 4
    s_lshl_b32 {sT1}, {sWV}, 2
    s_add_u32 {sT0}, {sT0}, {sT1}
    v_add_u32 v{TMP + 1}, {sT0}, v{TMP + 1}
    v_cmp_gt_u32 vcc, 4, {vLANE}
    s_nop 1
    v_cndmask_b32 v{TMP}, v{TMP}, v{TMP + 1}, vcc
    v_lshlrev_b32 v{TMP}, 7, v{TMP}
    v_add_u32 {vr(vPA)}, 0x{WS_FLAGS + F_PREP * 128:x}, v{TMP}
    """)
    return s


def aug_loads():
    T = TMP
    s = L(f"""
    v_lshlrev_b32 v{T}, 2, v{T + 2}
    v_subrev_u32 v{T + 1}, 1920, v{T + 2}
    v_cmp_le_u32 vcc, 1920, v{T + 2}
    v_lshlrev_b32 v{T + 1}, 1, v{T + 1}
    v_mov_b32 v{T + 3}, 0x{OOB:x}
    v_cndmask_b32 v{T + 1}, v{T + 3}, v{T + 1}, vcc
    """)
    for p in range(8):
        s.append(lit(sT0, WS_COLS + p * 16384))
        s.append(I(f"buffer_load_dword v{T + 4 + p}, v{T}, {SWS}, {sT0} offen sc1"))
    s += L(f"""
    buffer_load_ushort v{T + 12}, v{T + 1}, {SB1}, 0 offen
    s_lshl_b32 {sT0}, {sRB}, 7
    s_lshl_b32 {sT1}, {sWV}, 5
    s_add_u32 {sT0}, {sT0}, {sT1}
    s_lshl_b32 {sT0}, {sT0}, 5
    s_add_u32 {sT0}, {sT0}, 0x{WS_STATS:x}
    v_and_b32 v{T}, 31, {vLANE}
    v_lshlrev_b32 v{T}, 5, v{T}
    v_cmp_gt_u32 vcc, 32, {vLANE}
    buffer_load_dwordx2 v[{T + 14}:{T + 15}], v{T}, {SWS}, {sT0} offen offset:16 sc1
    v_cndmask_b32 v{T + 1}, v{T + 3}, v{T}, vcc
    buffer_load_dwordx4 {vr(vBAUG, 4)}, v{T + 1}, {SWS}, {sT0} offen sc1
    """)
    return s


def aug_build():
    T = TMP
    s = L(f"""
    v_add_f32 v{T + 4}, v{T + 4}, v{T + 5}
    v_add_f32 v{T + 6}, v{T + 6}, v{T + 7}
    v_add_f32 v{T + 8}, v{T + 8}, v{T + 9}
    v_add_f32 v{T + 10}, v{T + 10}, v{T + 11}
    v_add_f32 v{T + 4}, v{T + 4}, v{T + 6}
    v_add_f32 v{T + 8}, v{T + 8}, v{T + 10}
    v_lshlrev_b32 v{T}, 4, v0
    v_add_f32 v{T + 4}, v{T + 4}, v{T + 8}
    v_add_u32 v{T}, 0x{L_AUG:x}, v{T}
    v_cvt_pk_bf16_f32 v{T + 5}, v{T + 4}, v{T + 4}
    v_mov_b32 v{T + 11}, 0
    v_lshlrev_b32 v{T + 6}, 16, v{T + 5}
    v_and_b32 v{T + 5}, 0xffff, v{T + 5}
    v_sub_f32 v{T + 6}, v{T + 4}, v{T + 6}
    v_lshl_or_b32 v{T + 9}, v{T + 12}, 16, v{T + 5}
    v_cvt_pk_bf16_f32 v{T + 8}, v{T + 4}, v{T + 6}
    v_mov_b32 v{T + 10}, v{T + 12}
    v_mov_b32 {vr(vC)}, v{T + 14}
    v_mov_b32 {vr(vRSTD)}, v{T + 15}
    ds_write_b128 v{T}, v[{T + 8}:{T + 11}]
    """)
    return s


def epi_act(acc, K, soff, tile, T=TMP):
    U, A, O = T, T + 4, T + 8
    s = []
    for b in range(4):
        e = [acc + 4 * b + i for i in range(4)]
        s += [I(f"v_mul_f32 v{r}, v{r}, {vr(vC)}") for r in e]
        s += [I(f"v_exp_f32 v{U + i}, v{e[i]}") for i in range(4)]
        s += [I(f"v_fma_f32 v{A + i}, v{U + i}, -0.5, -1.0") for i in range(4)]
        s += [I(f"v_fma_f32 v{A + i}, v{U + i}, v{A + i}, {K}") for i in range(4)]
        s += [I(f"v_rcp_f32 v{A + i}, v{A + i}") for i in range(4)]
        s += [I(f"v_fma_f32 v{e[i]}, v{e[i]}, v{A + i}, v{e[i]}") for i in range(4)]
        s += [I(f"v_cvt_pk_bf16_f32 v{O + 2 * b}, v{e[0]}, v{e[1]}"), I(f"v_cvt_pk_bf16_f32 v{O + 2 * b + 1}, v{e[2]}, v{e[3]}")]
        if b & 1:
            o = O + 4 * (b >> 1)
            s.append(I(f"buffer_store_dwordx4 v[{o}:{o + 3}], {vr(vST)}, {SWS}, {soff} offen offset:{tile * 1024 + (b >> 1) * 256} sc1"))
    return s


def epi_q(acc, soff, tile, T=TMP):
    O = T + 8
    s = []
    for b in range(2):
        e = [acc + 8 * b + i for i in range(8)]
        s += [I(f"v_mul_f32 v{r}, v{r}, {vr(vC)}") for r in e]
        s += [I(f"v_cvt_pk_bf16_f32 v{O + 4 * b + i}, v{e[2 * i]}, v{e[2 * i + 1]}") for i in range(4)]
        s.append(I(f"buffer_store_dwordx4 v[{O + 4 * b}:{O + 4 * b + 3}], {vr(vST)}, {SWS}, {soff} offen offset:{tile * 1024 + b * 256} sc1"))
    return s


class Stream:
    PD = 3

    def __init__(self, pos=0):
        self.fr = []
        self.ev = {}
        self.pos0 = pos

    def add(self, reads, mfma):
        self.fr.append((reads, mfma))
        return len(self.fr) - 1

    def event(self, j, insts):
        self.ev.setdefault(j, []).extend(insts)

    def reads(self, j):
        if j >= len(self.fr):
            return self.ev.get(j, [])
        return self.ev.get(j, []) + self.fr[j][0](RING[(j + self.pos0) % 4])

    def build(self):
        pro = []
        for j in range(min(self.PD, len(self.fr))):
            pro += self.reads(j)
        groups = []
        for i in range(len(self.fr)):
            groups.append([self.fr[i][1](RING[(i + self.pos0) % 4])] + self.reads(i + self.PD))
        return pro, groups


def tr_unit(tile, slot, step):
    base = vTA[tile][slot >> 2]
    off = (slot & 3) * 16384 + step * 2048
    return lambda d: [I(f"ds_read_b64_tr_b16 v[{d}:{d + 1}], {vr(base)} offset:{off}"),
                      I(f"ds_read_b64_tr_b16 v[{d + 2}:{d + 3}], {vr(base)} offset:{off + 512}")]


def mm(acc, kstep, first):
    return lambda a: I(f"v_mfma_f32_32x32x16_bf16 {vr(acc, 16)}, {vr(a, 4)}, {ar(4 * kstep, 4)}, " + ("0" if first else vr(acc, 16)))


def aug_frag(base, off, acc):
    return (lambda d: [I(f"ds_read_b128 {vr(d, 4)}, {vr(base)} offset:{off}")],
            lambda a: I(f"v_mfma_f32_32x32x16_bf16 {vr(acc, 16)}, {vr(a, 4)}, {vr(vBAUG, 4)}, {vr(acc, 16)}"))


def x_reads(stage, slot):
    return [I(f"ds_read_b128 {ar(16 * stage + 4 * k, 4)}, {vr(vXR[slot >> 2][k])} offset:{(slot & 3) * 16384}") for k in range(4)]


W2REG = {}
for n in range(4):
    W2REG[n] = ("a", 160 + 20 * n)
for n in range(4, 10):
    W2REG[n] = ("v", 128 + 20 * (n - 4))
for n in range(10, 14):
    W2REG[n] = ("a", 80 + 20 * (n - 10))
for n in range(14, 18):
    W2REG[n] = ("a", 160 + 20 * (n - 14))
W2REG[18] = ("v", 128)


def w2_loads(n, st=sT3, vW2A=vW2A, vW2B=vW2B):
    f, b = W2REG[n]
    s = [lit(st, n * 20480)]
    for ct in range(5):
        r = f"{f}[{b + 4 * ct}:{b + 4 * ct + 3}]"
        if ct < 4:
            s.append(I(f"buffer_load_dwordx4 {r}, {vr(vW2A)}, {SWS}, {st} offen offset:{ct * 1024} sc1"))
        else:
            s.append(I(f"buffer_load_dwordx4 {r}, {vr(vW2B)}, {SWS}, {st} offen sc1"))
    return s


def w2_poll():
    T = TMP + 16
    a = L(f"""
    v_lshlrev_b32 {vr(vPA)}, 7, {vLANE}
    v_add_u32 {vr(vPA)}, 0x{WS_FLAGS + F_W2 * 128:x}, {vr(vPA)}
    v_add_u32 v{T}, {64 * 128}, {vr(vPA)}
    """) + poll_issue() + poll_issue(T, T + 1)
    c1, b1 = poll_check()
    c2, b2 = poll_check(T, T + 1)
    return a, c1 + b1 + c2 + b2


def repack_setup(rnd):
    b = int(SR[2:SR.index(":")])
    V = TMP + 16
    s = L(f"""
    s_lshl_b32 {sT0}, {sMI}, 2
    s_add_u32 {sT0}, {sT0}, {sWV}
    s_add_u32 {sT0}, {sT0}, {512 * rnd}
    s_mul_i32 {sT1}, {sT0}, 6554
    s_lshr_b32 {sT1}, {sT1}, 16              ; ks74
    s_mul_i32 {sT2}, {sT1}, 10
    s_sub_u32 {sT2}, {sT0}, {sT2}            ; cu
    s_cmp_lt_u32 {sT1}, 54
    s_cselect_b32 s{b}, s18, s10
    s_cselect_b32 s{b + 1}, s19, s11
    s_cselect_b32 s{b + 2}, 2211840, 819200
    s_cselect_b32 s3, 0, 2
    s_and_b32 s{b + 1}, s{b + 1}, 0xffff
    s_cmp_lt_u32 {sT0}, 740
    s_cselect_b32 s{b + 2}, s{b + 2}, 0
    s_cselect_b32 s99, 0, 0x{OOB:x}
    s_add_u32 s3, s3, {sT1}                  ; slot
    s_mul_i32 s3, s3, 5120
    s_add_u32 s3, s3, 0x{WS_W2F:x}
    """)
    for c in range(4):
        s += L(f"""
        s_lshl_b32 {sT0}, {sT2}, 2
        s_add_u32 {sT0}, {sT0}, {c}
        s_mul_i32 {sT3}, {sT0}, 205
        s_lshr_b32 {sT3}, {sT3}, 10
        s_mul_i32 s{20 + c}, {sT3}, {76 * 5120 - 5 * 1024}
        s_lshl_b32 {sT0}, {sT0}, 10
        s_add_u32 s{20 + c}, s{20 + c}, {sT0}
        s_add_u32 s{20 + c}, s{20 + c}, s3
        """)
    s += L(f"""
    v_lshrrev_b32 v{V}, 3, {vLANE}
    v_lshrrev_b32 v{V + 1}, 5, {vLANE}
    v_mul_u32_u24 v{V + 1}, 16, v{V + 1}
    s_cmp_ge_u32 {sT1}, 70
    s_cselect_b32 {sT0}, 1, 0
    v_mul_u32_u24 v{V + 1}, {sT0}, v{V + 1}
    v_add_u32 v{V}, v{V}, v{V + 1}           ; rem: (i&3) + 20e = i + 16e
    v_mul_u32_u24 v{V}, 1280, v{V}
    v_and_b32 v{V + 1}, 7, {vLANE}
    v_lshl_add_u32 v{V}, v{V + 1}, 4, v{V}
    s_lshl_b32 {sT0}, {sT1}, 5
    s_sub_u32 {sT3}, {sT1}, 54
    s_mul_i32 {sT3}, {sT3}, 40
    s_cmp_ge_u32 {sT1}, 54
    s_cselect_b32 {sT0}, {sT3}, {sT0}
    s_cselect_b32 s3, {20 * 1280}, {16 * 1280}
    s_sub_u32 {sT3}, {sT1}, 70
    s_mul_i32 {sT3}, {sT3}, 160
    s_add_u32 {sT3}, {sT3}, 16
    s_cmp_ge_u32 {sT1}, 70
    s_cselect_b32 {sT0}, {sT3}, {sT0}
    s_cselect_b32 s3, {80 * 1280}, s3
    s_cselect_b32 {sT1}, {40 * 1280}, {8 * 1280}
    s_mul_i32 {sT0}, {sT0}, 1280
    s_lshl_b32 {sT2}, {sT2}, 7
    s_add_u32 {sT0}, {sT0}, {sT2}
    s_add_u32 m0, {sLQ}, 0x{L_CB_M:x}
    s_add_u32 {sT2}, {sT0}, {sT1}
    buffer_load_dwordx4 v{V}, {SR}, {sT0} offen lds
    s_add_u32 m0, {sLQ}, 0x{L_CB_M + 1024:x}
    s_add_u32 {sT0}, {sT0}, s3
    buffer_load_dwordx4 v{V}, {SR}, {sT2} offen lds
    s_add_u32 m0, {sLQ}, 0x{L_CB_M + 2048:x}
    s_add_u32 {sT2}, {sT2}, s3
    buffer_load_dwordx4 v{V}, {SR}, {sT0} offen lds
    s_add_u32 m0, {sLQ}, 0x{L_CB_M + 3072:x}
    s_nop 0
    buffer_load_dwordx4 v{V}, {SR}, {sT2} offen lds
    """)
    return s


def repack_finish(dmas, R):
    V = TMP + 16
    s = L(f"""
    v_lshrrev_b32 v{V}, 4, {vLANE}
    v_bfe_u32 v{V + 1}, {vLANE}, 2, 2
    v_lshl_add_u32 v{V}, v{V}, 3, v{V + 1}
    v_and_b32 v{V + 1}, 3, {vLANE}
    v_lshlrev_b32 v{V + 1}, 3, v{V + 1}
    v_lshl_add_u32 v{V}, v{V}, 7, v{V + 1}
    v_add_u32 v{V}, {sLQ}, v{V}
    v_add_u32 v{V}, 0x{L_CB_M:x}, v{V}
    v_lshlrev_b32 v{V + 1}, 4, {vLANE}
    v_or_b32 v{V + 1}, s99, v{V + 1}
    """)
    s.append(WaitVM(dmas))
    rd = []
    for c in range(4):
        for e in range(2):
            rd.append(I(f"ds_read_b64_tr_b16 v[{R + 4 * c + 2 * e}:{R + 4 * c + 2 * e + 1}], v{V} offset:{c * 32 + e * 512}"))
    s += rd
    st = [I(f"buffer_store_dwordx4 v[{R + 4 * c}:{R + 4 * c + 3}], v{V + 1}, {SWS}, s{20 + c} offen sc1") for c in range(4)]
    s += st
    return s, rd, st


def role_M(out, st, cdma):
    s = [Label("LroleM")]
    bu1 = int(SU1[2:SU1.index(":")])
    bu3 = int(SU3[2:SU3.index(":")])
    s += L(f"""
    s_lshl_b32 {sU0B}, {sG}, 7
    s_lshl_b32 {sT0}, {sG}, 11
    s_add_u32 {sKS0}, {sT0}, {76 * 1024}
    s_cmp_lt_u32 {sG}, 2
    s_cselect_b32 s{bu1}, s6, s14
    s_cselect_b32 s{bu1 + 1}, s7, s15
    s_cselect_b32 s{bu1 + 2}, 2457600, 2211840
    s_cselect_b32 {sU1CS}, 3840, 3456
    s_cselect_b32 {sT1}, 8, -2
    s_cselect_b32 {sT2}, {76 * 1024}, 0
    s_cselect_b32 {sK1}, 0xff800000, 0xbf800000
    s_cselect_b32 {sFL1}, {F_Q}, {F_ACT}
    s_cselect_b32 {sT3}, 4, 5
    s_and_b32 s{bu1 + 1}, s{bu1 + 1}, 0xffff
    s_mov_b32 s{bu1 + 3}, 0x20000
    s_add_u32 {sT1}, {sT1}, {sG}
    s_lshl_b32 {sU1B}, {sT1}, 7
    s_lshl_b32 {sKS1}, {sT1}, 11
    s_add_u32 {sKS1}, {sKS1}, {sT2}
    s_lshl_b32 {sT2}, {sRB}, {sT3}
    s_add_u32 {sFL1}, {sFL1}, {sT2}
    s_add_u32 {sFL1}, {sFL1}, {sT1}
    s_lshl_b32 {sFL1}, {sFL1}, 7
    s_add_u32 {sFL1}, {sFL1}, 0x{WS_FLAGS:x}
    """)
    s += w_offsets(vWQ, 3840)
    first = xs_load(0, 0) + xs_load(1, 16384) + dma4(SWQ, vWQ, sU0B, 2 * 16384) + xs_load(2, 3 * 16384)
    XS = {0: vmops(first)[0:4], 1: vmops(first)[4:8], 2: vmops(first)[12:16]}
    WC = {(0, 0): vmops(first)[8:12]}
    s += first
    s += common_setup()
    s += w_offsets(vU1, sU1CS)
    s += L(f"""
    s_lshl_b32 {sU1CS}, {sU1CS}, 7
    s_add_u32 {sT0}, {sG}, 6
    s_lshl_b32 {sU2B}, {sT0}, 7
    s_lshl_b32 {sKS2}, {sT0}, 11
    s_lshl_b32 {sT1}, {sRB}, 5
    s_add_u32 {sT1}, {sT1}, {F_ACT}
    s_add_u32 {sFL2}, {sT1}, {sT0}
    s_lshl_b32 {sFL2}, {sFL2}, 7
    s_add_u32 {sFL2}, {sFL2}, 0x{WS_FLAGS:x}
    s_add_u32 {sFL3}, {sFL2}, {8 * 128}
    s_add_u32 {sU3B}, {sU2B}, {8 * 128}
    s_add_u32 {sKS3}, {sKS2}, {8 * 2048}
    s_lshl_b32 {sT1}, {sRB}, 4
    s_add_u32 {sT1}, {sT1}, {sG}
    s_add_u32 {sT1}, {sT1}, {F_Q}
    s_lshl_b32 {sFL0}, {sT1}, 7
    s_add_u32 {sFL0}, {sFL0}, 0x{WS_FLAGS:x}
    s_mov_b32 s{bu3}, s14
    s_and_b32 s{bu3 + 1}, s15, 0xffff
    s_cmp_lt_u32 {sG}, 5
    s_cselect_b32 s{bu3 + 2}, 2211840, 0
    s_cselect_b32 {sKS3}, {sKS3}, {sKS2}
    s_mov_b32 s{bu3 + 3}, 0x20000
    """)
    s += stats_compute()
    pst = vmops(s)[-2:]
    cs = colsum_compute(cdma)
    pst += vmops(cs)
    s += cs
    s += stamp(1)

    def load(kind, idx, slot):
        if kind == "X":
            c = xs_load(idx, slot * 16384)
            XS[idx] = vmops(c)
        else:
            u, ch = idx
            if u == 0:
                c = [I(f"s_add_u32 {sT0}, {sU0B}, {ch * 128 * 3840}")] + dma4(SWQ, vWQ, sT0, slot * 16384)
            elif u == 1:
                c = ([I(f"s_add_u32 {sU1B}, {sU1B}, {sU1CS}")] if ch else []) + dma4(SU1, vU1, sU1B, slot * 16384)
            else:
                c = [I(f"s_add_u32 {sT0}, {sU2B if u == 2 else sU3B}, {ch * 128 * 3456}")] + dma4(SW1 if u == 2 else SU3, vW1, sT0, slot * 16384)
            WC[idx] = vmops(c)
        SLOT[(kind, idx)] = slot
        return c
    SLOT = {("X", 0): 0, ("X", 1): 1, ("W", (0, 0)): 2, ("X", 2): 3}
    s += load("X", 3, 4) + load("W", (0, 1), 5) + load("X", 4, 6) + load("X", 5, 7)
    s += small_dmas()
    s += L(f"""
    s_add_u32 {sT0}, {sG}, 3
    s_and_b32 {sT0}, {sT0}, 7
    s_lshl_b32 {sT0}, {sT0}, 4
    s_add_u32 {sMI}, {sT0}, {sRB}
    """)
    s += prep_poll_addr("M")
    plan = {0: [None, ("W", (0, 2), 0), ("X", 6, 1)],
            1: [("X", 7, 2), ("W", (0, 3), 3), ("X", 8, 4)],
            2: [("X", 9, 5), ("W", (0, 4), 6), ("W", (1, 0), 7)],
            3: [("W", (1, 1), 0), ("W", (1, 2), 1), ("W", (1, 3), 2)],
            4: [("W", (1, 4), 3), ("W", (2, 0), 4), ("W", (2, 1), 5)]}
    rp_dma = None
    for c in range(5):
        s.append(WaitVM(XS[2 * c]))
        xr = x_reads(2 * c, SLOT[("X", 2 * c)])
        s += xr
        s.append(WaitVM(XS[2 * c + 1]))
        xr2 = x_reads(2 * c + 1, SLOT[("X", 2 * c + 1)])
        s += xr2
        s += [WaitVM(WC[(0, c)]), I("s_barrier")]
        S = Stream()
        for k in range(8):
            for t in range(2):
                S.add(tr_unit(t, SLOT[("W", (0, c))], k), mm(ACC[t], 8 * c + k, c == 0 and k == 0))
        pro, groups = S.build()
        side = []
        if plan[c][0]:
            side += load(*plan[c][0])
        if c == 4:
            rp = repack_setup(0)
            rp_dma = vmops(rp)
        side2 = [WaitLG(xr + xr2)]
        if c == 4:
            side2 = rp + side2
        side2 += load(*plan[c][1]) + load(*plan[c][2])
        if c == 2:
            side2 += poll_issue()
        pre = []
        if c == 3:
            c1, b1 = poll_check()
            pre = c1 + b1 + aug_loads()
        s += pro
        body, rest = merge(groups, pre + side + side2, budget=28)
        s += body + rest
        if c == 0:
            s += [WaitVM(pst), I("s_barrier"), I(f"s_lshl_b32 {sT0}, s2, 7"), I(f"s_add_u32 {sT0}, {sT0}, 0x{WS_FLAGS + F_PREP * 128:x}")] + publish(sT0)
    s += stamp(2)
    S = Stream()
    idx = {}
    accs = {2: ACC[2], 3: ACC[0], 4: ACC[1], 5: ACC[2], 6: ACC[0], 7: ACC[1]}
    augw = aug_build()
    for T in range(2, 8):
        u, t = T >> 1, T & 1
        for k in range(40):
            if T == 2 and k == 16:
                idx["aug0"] = S.add(*aug_frag(vAUG, 0, ACC[0]))
                S.add(*aug_frag(vAUG, 512, ACC[1]))
            j = S.add(None, mm(accs[T], k, k == 0))
            idx[(T, k)] = j
        idx[(T, "aug")] = S.add(*aug_frag(vAUG, u * 1024 + t * 512, accs[T]))
    bar = lambda: I("s_barrier")
    S.event(idx[(2, 0)], [WaitVM(WC[(1, 0)]), bar()] + load("W", (2, 2), 6))
    S.event(idx[(2, 8)], [WaitVM(WC[(1, 1)]), bar()])
    S.event(idx["aug0"], [WaitLG(augw[-1]), WaitVM(WC[(1, 2)]), bar()])
    S.event(idx[(2, 24)], [WaitVM(WC[(1, 3)]), bar()])
    S.event(idx[(2, 32)], [WaitVM(WC[(1, 4)]), bar()])
    eq = epi_q(ACC[0], sKS0, 0) + epi_q(ACC[1], sKS0, 1)
    rf0, rd0, st0 = repack_finish(rp_dma, 128)
    rp1 = repack_setup(1)
    rf1, rd1, st1 = repack_finish(vmops(rp1), 144)
    S.event(idx[(3, 19)], [WaitVM(vmops(eq)), bar()] + publish(sFL0) + load("W", (2, 3), 7) + load("W", (2, 4), 0))
    w2fl = L(f"""
    s_lshl_b32 {sT1}, {sMI}, 7
    s_add_u32 {sT1}, {sT1}, 0x{WS_FLAGS + F_W2 * 128:x}""")
    S.event(idx[(4, 0)], [WaitVM(WC[(2, 2)]), bar()])
    S.event(idx[(4, 3)], [bar()] + load("W", (3, 0), 1) + load("W", (3, 1), 2) + load("W", (3, 2), 3))
    S.event(idx[(4, 24)], [WaitVM(WC[(2, 4)] + st1), bar()] + w2fl + publish(sT1))
    e2 = epi_act(accs[2], sK1, sKS1, 0)
    e3 = epi_act(accs[3], sK1, sKS1, 1)
    e4 = epi_act(accs[4], "-1.0", sKS2, 0)
    e5 = epi_act(accs[5], "-1.0", sKS2, 1)
    e6 = epi_act(accs[6], "-1.0", sKS3, 0)
    e7 = epi_act(accs[7], "-1.0", sKS3, 1)
    S.event(idx[(5, 19)], [WaitVM(vmops(e3)), bar()] + publish(sFL1) + load("W", (3, 3), 4) + load("W", (3, 4), 5))
    S.event(idx[(6, 0)], [WaitVM(WC[(3, 2)]), bar()])
    S.event(idx[(6, 24)], [WaitVM(WC[(3, 4)]), bar()])
    S.event(idx[(7, 20)], [WaitVM(vmops(e5)), bar()] + publish(sFL2))
    for T in range(2, 8):
        u, t = T >> 1, T & 1
        for k in range(40):
            S.fr[idx[(T, k)]] = (tr_unit(t, SLOT[("W", (u, k >> 3))], k & 7), S.fr[idx[(T, k)]][1])
    pro, groups = S.build()
    seg = lambda a, b: groups[a:b]
    s += pro
    a0 = idx["aug0"]
    body, rest = merge(seg(0, a0 - 3), augw + rf0)
    s += body + rest
    body, rest = merge(seg(a0 - 3, a0 + 5), [WaitLG(rd0)] + rp1)
    s += body + rest
    body, rest = merge(seg(a0 + 5, idx[(3, 0)]), eq)
    s += body + rest
    s += stamp(3)
    body, rest = merge(seg(idx[(3, 0)], idx[(4, 0)]), e2 + rf1, start=2)
    s += body + rest
    body, rest = merge(seg(idx[(4, 0)], idx[(5, 0)]), e3, start=2)
    s += body + rest
    s += stamp(4)
    wi, wc = w2_poll()
    body, rest = merge(seg(idx[(5, 0)], idx[(6, 0)] - 3), e4[:40] + wi + e4[40:], start=2)
    s += body + rest
    st = out.emit(s, st)
    stM3 = st.copy()
    out.emit([I(f"s_cmp_ge_u32 {sG}, 5"), I("s_cbranch_scc1 LtailM3")], st)
    s = []
    s += [g for grp in seg(idx[(6, 0)] - 3, idx[(6, 0)]) for g in grp]
    pf = []
    for n in range(10):
        pf.append(w2_loads(n))
    def spread(e, loads):
        o = []
        step = max(1, len(e) // (len(loads) + 1))
        li = 0
        for i, x in enumerate(e):
            o.append(x)
            if (i + 1) % step == 0 and li < len(loads):
                o.append(loads[li]); li += 1
        return o + loads[li:]
    flat = lambda l: [x for y in l for x in y]
    body, rest = merge(seg(idx[(6, 0)], idx[(7, 0)]), wc + spread(e5, flat(pf[0:5])), start=2, budget=28)
    s += body + rest
    body, rest = merge(seg(idx[(7, 0)], len(groups)), spread(e6, flat(pf[5:10])), start=2, budget=28)
    s += body + rest
    s += e7
    s += [I(f"s_mov_b32 {sFLL}, {sFL3}"), I("s_branch Ljoin")]
    st = out.emit(s, st)
    s = [Label("LtailM3"), I("s_nop 3")]
    s += [grp[0] for grp in seg(idx[(6, 0)] - 3, idx[(6, 0)])]
    wi2, wc2 = w2_poll()
    e5b = epi_act(accs[5], "-1.0", sKS2, 1)
    s += wi2 + e5b + wc2
    for n in range(10):
        s += w2_loads(n)
    s += [I(f"s_mov_b32 {sFLL}, {sFL2}"), I("s_branch Ljoin")]
    stM3 = out.emit(s, stM3)
    return [st, stM3]


def role_KV(out, st, cdma):
    s = [Label("LroleKV")]
    s += L(f"""
    s_mul_i32 {sT0}, {sG}, 160
    s_add_u32 {sT0}, {sT0}, 1280
    s_mul_i32 {sT1}, {sWV}, {16 * 3840}
    s_add_u32 {sT0}, {sT0}, {sT1}
    """)
    for n in range(5):
        s += L(f"""
        v_add_u32 v148, {64 * n}, {vLANE}
        v_mul_u32_u24 v149, 3277, v148
        v_lshrrev_b32 v149, 16, v149
        v_mul_u32_u24 v150, 20, v149
        v_sub_u32 v150, v148, v150
        v_cmp_le_u32 vcc, 10, v150
        v_lshlrev_b32 v150, 4, v150
        v_add_u32 v151, {1280 - 160}, v150
        v_cndmask_b32 v150, v150, v151, vcc
        v_mul_u32_u24 v149, 3840, v149
        v_add3_u32 {vr(vKD[n])}, v149, v150, {sT0}
        """)
        if 0 < n < 4:
            s.append(I(f"v_subrev_u32 {vr(vKD[n])}, {1024 * n}, {vr(vKD[n])}"))
    s += [I(f"s_mul_i32 {sU1B}, {sWV}, 5120")]
    XS, KS, WC = {}, {}, {}

    def xs(i):
        c = xs_load(i, (i % 4) * 16384)
        XS[i] = vmops(c)
        return c

    def ks(i):
        base = L_KR + (i % 4) * 20480
        c = [lit(sT0, i * 64 * 3840), I(f"s_add_u32 m0, {sU1B}, 0x{base:x}")]
        for n in range(4):
            c.append(I(f"buffer_load_dwordx4 {vr(vKD[n])}, {SWQ}, {sT0} offen" + (f" offset:{n * 1024}" if n else "") + " lds"))
        c += [I(f"s_add_u32 m0, {sU1B}, 0x{base + 4096:x}"), I("s_nop 0"), I(f"buffer_load_dwordx4 {vr(vKD[4])}, {SWQ}, {sT0} offen lds")]
        KS[i] = vmops(c)
        return c
    WSLOT = {0: 2, 1: 3, 2: 0, 3: 1, 4: 4}

    def wc(ch):
        c = [I(f"s_add_u32 {sT0}, {sU3B}, {ch * 128 * 3456}")] + dma4(SW1, vW1, sT0, WSLOT[ch] * 16384)
        WC[ch] = vmops(c)
        return c
    s += xs(0) + ks(0) + xs(1) + ks(1)
    s += common_setup()
    s += L(f"""
    s_add_u32 {sT0}, {sG}, 19
    s_lshl_b32 {sU3B}, {sT0}, 7
    s_lshl_b32 {sKS3}, {sT0}, 11
    s_lshl_b32 {sT1}, {sRB}, 5
    s_add_u32 {sT1}, {sT1}, {F_ACT}
    s_add_u32 {sFLL}, {sT1}, {sT0}
    s_lshl_b32 {sFLL}, {sFLL}, 7
    s_add_u32 {sFLL}, {sFLL}, 0x{WS_FLAGS:x}
    s_lshl_b32 {sT0}, {sG}, 4
    s_add_u32 {sT0}, {sT0}, {sRB}
    s_add_u32 {sT0}, {sT0}, {F_KV}
    s_lshl_b32 {sFL0}, {sT0}, 7
    s_add_u32 {sFL0}, {sFL0}, 0x{WS_FLAGS:x}
    """)
    s += L(f"""
    v_bfe_u32 v148, {vLANE}, 2, 2
    v_lshrrev_b32 v149, 5, {vLANE}
    v_lshl_add_u32 v148, v149, 3, v148
    v_mul_u32_u24 v148, 320, v148
    v_add_u32 v148, 0x{L_KR:x}, v148
    v_and_b32 v149, 3, {vLANE}
    v_lshlrev_b32 v149, 3, v149               ; 8*c
    v_bfe_u32 v150, {vLANE}, 2, 2
    v_lshlrev_b32 v150, 3, v150               ; 8*((m>>2)&3)
    v_and_b32 v151, 3, {vLANE}
    v_lshlrev_b32 v151, 4, v151
    v_add_u32 v151, 0x{L_AUG:x}, v151
    v_and_b32 v152, 16, {vLANE}
    v_cmp_eq_u32 vcc, 0, v152
    """)
    for t in range(5):
        pc = lambda mc: P[mc & 1][4 * t + (mc >> 1)]
        c0 = sum(pc(mc) << (8 * mc) for mc in range(4))
        c1 = sum(pc(4 + mc) << (8 * mc) for mc in range(4))
        s += L(f"""
        v_mov_b32 v152, 0x{c1:x}
        v_mov_b32 v153, 0x{c0:x}
        v_cndmask_b32 v152, v152, v153, vcc
        v_bfe_u32 v153, v152, v149, 8
        v_lshl_add_u32 {vr(vKT[0][t])}, v153, 3, v148
        v_add_u32 {vr(vKT[1][t])}, {2 * 20480}, {vr(vKT[0][t])}
        v_bfe_u32 v153, v152, v150, 8
        v_lshl_add_u32 {vr(vKAUG[t])}, v153, 6, v151
        """)
    s += stats_compute()
    pst = vmops(s)[-2:]
    cs = colsum_compute(cdma)
    pst += vmops(cs)
    s += cs
    s += stamp(1)
    s += xs(2) + ks(2) + xs(3)
    wp = L(f"""
    s_mul_i32 {sT0}, {sG}, 3200
    v_lshlrev_b32 v152, 4, v0
    s_lshl_b32 {sT1}, {sWV}, 10
    s_add_u32 m0, {sT1}, 0x{L_WPH:x}
    s_nop 0
    buffer_load_dwordx4 v152, {SPH}, {sT0} offen lds
    """)
    s += wp + small_dmas()
    small = vmops(wp) + vmops(s)[-2:]
    s += prep_poll_addr("KV")
    T = 76
    wf = L(f"""
    v_lshrrev_b32 v{T}, 5, {vLANE}            ; hk
    v_and_b32 v{T + 1}, 1, {vLANE}            ; h'
    v_bfe_u32 v{T + 2}, {vLANE}, 4, 1
    v_bfe_u32 v{T + 3}, {vLANE}, 1, 1
    v_lshl_add_u32 v{T + 2}, v{T + 2}, 1, v{T + 3}   ; q
    v_bfe_u32 v{T + 3}, {vLANE}, 2, 2
    v_mul_u32_u24 v{T + 3}, 40, v{T + 3}
    v_add_u32 v{T + 3}, 0x{L_WPH:x}, v{T + 3}  ; + r*40
    v_mov_b32 v{T + 4}, 0x{L_ZERO:x}
    """)
    PAIRS = [(0, 0), (0, 1), (0, 2), (1, 0), (1, 1), (1, 2), (1, 3), (1, 4), (2, 2), (2, 3), (2, 4)]
    for tp in range(3):
        wf += L(f"""
        v_add_u32 v{T + 5}, {4 * tp}, v{T + 2}
        v_mul_u32_u24 v{T + 6}, 52, v{T + 5}
        v_lshrrev_b32 v{T + 6}, 8, v{T + 6}          ; slot
        v_mul_u32_u24 v{T + 7}, 5, v{T + 6}
        v_sub_u32 v{T + 5}, v{T + 5}, v{T + 7}
        v_lshl_add_u32 v{T + 5}, v{T + 5}, 3, v{T + 3}
        v_xor_b32 v{T + 7}, v{T}, v{T + 1}
        v_lshl_add_u32 v{T + 6}, v{T + 7}, 2, v{T + 6}
        v_cmp_eq_u32 {sM0}, 0, v{T + 6}
        v_cmp_eq_u32 {sM1}, 1, v{T + 6}
        """)
        for fi, (tq, p) in enumerate(PAIRS):
            if tq != tp:
                continue
            for e in range(2):
                r4 = 2 * p + e
                a = [(P[h][r4] // 5) * 800 + (P[h][r4] % 5) * 160 for h in range(2)]
                m = sM0 if r4 < 5 else sM1
                wf += L(f"""
                v_mul_i32_i24 v{T + 8}, {a[1] - a[0]}, v{T}
                v_add3_u32 v{T + 8}, v{T + 8}, v{T + 5}, {sT3}
                v_cndmask_b32 v{T + 8}, v{T + 4}, v{T + 8}, {m}
                ds_read_b64_tr_b16 {ar(aWPH + 4 * fi + 2 * e, 2)}, v{T + 8}
                """)
                wf.insert(len(wf) - 4, lit(sT3, a[0]))
    augw = aug_build()
    for i in range(10):
        s.append(WaitVM(XS[i]))
        xr = x_reads(i, i % 4)
        s += xr
        s += [WaitVM(KS[i])]
        if i == 9:
            s += [WaitLG(augw[-1])]
        s += [I("s_barrier")]
        S = Stream(pos=0)
        for k in range(4):
            for t in range(5):
                base = vKT[(i % 4) >> 1][t]
                off = ((i % 4) & 1) * 20480 + k * 5120
                S.add((lambda b, o: (lambda d: [I(f"ds_read_b64_tr_b16 v[{d}:{d + 1}], {vr(b)} offset:{o}"),
                                                I(f"ds_read_b64_tr_b16 v[{d + 2}:{d + 3}], {vr(b)} offset:{o + 1280}")]))(base, off),
                      mm(KA + 16 * t, 4 * i + k, i == 0 and k == 0))
        if i == 9:
            for t in range(5):
                S.add(*aug_frag(vKAUG[t], 0, KA + 16 * t))
        pro, groups = S.build()
        side = []
        if 1 <= i <= 6:
            side += ks(i + 3)
        if i == 9:
            side += wc(4)
        side.append(WaitLG(xr))
        side += xs(i + 4) if i + 4 <= 9 else wc(i - 6)
        if i == 3:
            side += [WaitVM(small)]
        if i == 4:
            side += wf
        if i == 5:
            side += poll_issue()
        if i == 6:
            c1, b1 = poll_check()
            side = c1 + b1 + aug_loads() + side
        if i == 8:
            side += augw
        s += pro
        body, rest = merge(groups, side, budget=24)
        s += body + rest
        if i == 0:
            s += [WaitVM(pst), I("s_barrier"), I(f"s_lshl_b32 {sT0}, s2, 7"), I(f"s_add_u32 {sT0}, {sT0}, 0x{WS_FLAGS + F_PREP * 128:x}")] + publish(sT0)
            s += ks(3)
    s += stamp(2)
    KB = 76
    VB = 96
    vEX = 120
    s += L(f"""
    s_lshl_b32 {sT0}, {sWV}, 5
    v_and_b32 v{vEX}, 31, {vLANE}
    v_add_u32 v{vEX}, {sT0}, v{vEX}
    v_mul_u32_u24 v{vEX}, 544, v{vEX}
    v_lshrrev_b32 v{vEX + 1}, 5, {vLANE}
    v_lshl_add_u32 v{vEX}, v{vEX + 1}, 7, v{vEX}
    v_add_u32 v{vEX}, 0x{L_EX:x}, v{vEX}
    v_mov_b32 v{VB + 10}, 0x3f80
    v_mov_b32 v{VB + 11}, 0
    v_mov_b32 v{VB + 22}, 0x3f80
    v_mov_b32 v{VB + 23}, 0
    s_barrier
    """)
    s += [I(f"v_cvt_pk_bf16_f32 v{KB + i}, v{KA + 2 * i}, v{KA + 2 * i + 1}") for i in range(20)]
    groups = []
    seen = set()
    for fi, (tq, p) in enumerate(PAIRS):
        c = vr(PK + 16 * tq, 16) if tq in seen else "0"
        seen.add(tq)
        groups.append([I(f"v_mfma_f32_32x32x16_bf16 {vr(PK + 16 * tq, 16)}, {ar(aWPH + 4 * fi, 4)}, {vr(KB + 4 * p, 4)}, {c}")])
    side = []
    for r4 in range(10, 20):
        a = KA + 4 * r4
        d = VB + 2 * (r4 - 10)
        off = [((P[h][r4] - 20) // 5 - h) * 128 + 80 + ((P[h][r4] - 20) % 5) * 8 for h in range(2)]
        side += [I(f"v_mul_f32 v{a + i}, v{a + i}, {vr(vRSTD)}") for i in range(4)]
        side += [I(f"v_cvt_pk_bf16_f32 v{d}, v{a}, v{a + 1}"), I(f"v_cvt_pk_bf16_f32 v{d + 1}, v{a + 2}, v{a + 3}")]
        if off[0] == off[1]:
            side.append(I(f"ds_write_b64 v{vEX}, v[{d}:{d + 1}] offset:{off[0]}"))
        else:
            side.append(I(f"v_mul_i32_i24 v{vEX + 2}, {off[1] - off[0]}, v{vEX + 1}"))
            side.append(I(f"v_add_u32 v{vEX + 2}, v{vEX + 2}, v{vEX}"))
            side.append(I(f"ds_write_b64 v{vEX + 2}, v[{d}:{d + 1}] offset:{off[0]}"))
    side += L(f"""
    ds_write_b64 v{vEX}, v[{VB + 22}:{VB + 23}] offset:120
    ds_write_b64 v{vEX}, v[{VB + 22}:{VB + 23}] offset:{256 + 120}
    """)
    body, rest = merge(groups, side, budget=24)
    s += body + rest
    for hs in range(2):
        s += softmax_pm(PK + 20 * hs, KA, KA + 20, KA + 40, True)
        for i in range(5):
            s.append(I(f"ds_write_b128 v{vEX}, v[{KA + 40 + 4 * i}:{KA + 43 + 4 * i}] offset:{hs * 256 + 16 * i}"))
    s += stamp(3)
    A0, A1 = 121, 122
    s += L(f"""
    v_lshrrev_b32 v{A0}, 5, {vLANE}
    v_bfe_u32 v{A1}, {vLANE}, 4, 1
    v_lshlrev_b32 v{A0}, 4, v{A0}
    v_lshl_add_u32 v{A0}, v{A1}, 2, v{A0}
    v_bfe_u32 v{A1}, {vLANE}, 2, 2
    v_add_u32 v{A0}, v{A0}, v{A1}
    v_mul_u32_u24 v{A0}, 544, v{A0}
    s_lshl_b32 {sT0}, {sWV}, 7
    s_add_u32 {sT0}, {sT0}, 0x{L_EX:x}
    v_add_u32 v{A0}, {sT0}, v{A0}
    v_and_b32 v{A1 + 1}, 3, {vLANE}
    v_lshl_add_u32 v{A1}, v{A1 + 1}, 3, v{A0}
    v_lshl_add_u32 v{A0}, v{A1 + 1}, 4, v{A0}
    s_waitcnt lgkmcnt(0)
    s_barrier
    """)
    FR = KA
    KVA = PK
    for stp in range(4):
        for fi, (b, o) in enumerate([(A0, 0), (A0, 8), (A1, 64), (A1, 80), (A1, 112)]):
            for e in range(2):
                d = FR + 20 * stp + 4 * fi + 2 * e
                s.append(I(f"ds_read_b64_tr_b16 v[{d}:{d + 1}], v{b} offset:{stp * 32 * 544 + e * 8 * 544 + o}"))
    s += L(f"""
    s_lshl_b32 {sT0}, {sG}, 2
    s_add_u32 {sT0}, {sT0}, {sWV}
    s_lshl_b32 {sT0}, {sT0}, 4
    s_add_u32 {sT0}, {sT0}, {sRB}
    s_lshl_b32 {sT0}, {sT0}, 11
    s_add_u32 {sT0}, {sT0}, 0x{WS_KVP:x}
    v_lshlrev_b32 v76, 4, {vLANE}
    v_lshrrev_b32 v77, 4, {vLANE}
    v_and_b32 v78, 15, {vLANE}
    v_lshl_add_u32 v77, v77, 3, v78           ; g*8 + n
    v_mov_b32 v79, 0x{OOB:x}
    v_cmp_gt_u32 vcc, 8, v78
    v_lshlrev_b32 v80, 4, v77
    v_lshlrev_b32 v81, 3, v77
    v_cndmask_b32 v80, v79, v80, vcc
    v_cndmask_b32 v81, v79, v81, vcc
    v_cmp_gt_u32 vcc, 32, {vLANE}
    v_lshlrev_b32 v82, 3, {vLANE}
    s_nop 0
    v_cndmask_b32 v81, v79, v81, vcc
    v_cndmask_b32 v82, v79, v82, vcc
    """)
    for stp in range(4):
        for td in range(2):
            for tf in range(3):
                d = KVA + 4 * (3 * td + tf)
                c = "0" if stp == 0 else vr(d, 4)
                s.append(I(f"v_mfma_f32_16x16x32_bf16 {vr(d, 4)}, {vr(FR + 20 * stp + 4 * tf, 4)}, {vr(FR + 20 * stp + 12 + 4 * td, 4)}, {c}"))
    O = 84
    for td in range(2):
        for tf in range(3):
            d = KVA + 4 * (3 * td + tf)
            o = O + 6 * td + 2 * tf
            s += [I(f"v_cvt_pk_bf16_f32 v{o}, v{d}, v{d + 1}"), I(f"v_cvt_pk_bf16_f32 v{o + 1}, v{d + 2}, v{d + 3}")]
    kst = L(f"""
    buffer_store_dwordx4 v[{O}:{O + 3}], v76, {SWS}, {sT0} offen sc1
    buffer_store_dwordx2 v[{O + 4}:{O + 5}], v82, {SWS}, {sT0} offen offset:1536 sc1
    buffer_store_dwordx4 v[{O + 6}:{O + 9}], v80, {SWS}, {sT0} offen offset:1024 sc1
    buffer_store_dwordx2 v[{O + 10}:{O + 11}], v81, {SWS}, {sT0} offen offset:1792 sc1
    """)
    s += kst
    s += stamp(4)
    S = Stream()
    idx = {}
    for t in range(2):
        for k in range(40):
            idx[(t, k)] = S.add(tr_unit(t, WSLOT[k >> 3], k & 7), mm(ACC[t], k, k == 0))
        idx[(t, "aug")] = S.add(*aug_frag(vAUG, 3 * 1024 + t * 512, ACC[t]))
    S.event(0, [WaitVM(WC[4]), I("s_barrier")])
    S.event(idx[(0, 24)], [WaitVM(kst), I("s_barrier")] + publish(sFL0))
    pro, groups = S.build()
    wi, wcK = w2_poll()
    s += wi + pro
    pf = []
    for n in range(10):
        pf += w2_loads(n)
    body, rest = merge(groups[:idx[(1, 0)]], wcK + pf[:36], start=6, budget=24)
    s += body + rest
    e0 = epi_act(ACC[0], "-1.0", sKS3, 0)
    e1 = epi_act(ACC[1], "-1.0", sKS3, 1)
    o = []
    rem = pf[36:]
    for i, x in enumerate(e0):
        o.append(x)
        if i % 4 == 3 and rem:
            o.append(rem.pop(0))
    o += rem
    body, rest = merge(groups[idx[(1, 0)]:], o, start=2, budget=28)
    s += body + rest
    s += e1
    st = out.emit(s, st)
    return st


def softmax_pm(p, ep, em, dst, scaled):
    T = 123
    MX, MN = 124, 126
    s = [I(f"v_max3_f32 v{MX}, v{p}, v{p + 1}, v{p + 2}"), I(f"v_min3_f32 v{MN}, v{p}, v{p + 1}, v{p + 2}")]
    for i in range(3, 19, 2):
        s += [I(f"v_max3_f32 v{MX}, v{MX}, v{p + i}, v{p + i + 1}"), I(f"v_min3_f32 v{MN}, v{MN}, v{p + i}, v{p + i + 1}")]
    s += [I(f"v_max_f32 v{MX}, v{MX}, v{p + 19}"), I(f"v_min_f32 v{MN}, v{MN}, v{p + 19}")]
    if scaled:
        s += [I(f"v_mul_f32 v{MX}, v{MX}, {vr(vC)}"), I(f"v_mul_f32 v{MN}, v{MN}, {vr(vC)}"), I(f"v_mov_b32 v{T - 1}, {vr(vC)}")]
        C = T - 1
        for i in range(0, 20, 2):
            s.append(I(f"v_pk_fma_f32 v[{em + i}:{em + i + 1}], v[{p + i}:{p + i + 1}], v[{C}:{C + 1}], v[{MN}:{MN + 1}] op_sel_hi:[1,0,0] neg_lo:[0,1,0] neg_hi:[0,1,0]"))
            s.append(I(f"v_pk_fma_f32 v[{ep + i}:{ep + i + 1}], v[{p + i}:{p + i + 1}], v[{C}:{C + 1}], v[{MX}:{MX + 1}] op_sel_hi:[1,0,0] neg_lo:[0,0,1] neg_hi:[0,0,1]"))
    else:
        for i in range(0, 20, 2):
            s.append(I(f"v_pk_add_f32 v[{em + i}:{em + i + 1}], v[{p + i}:{p + i + 1}], v[{MN}:{MN + 1}] op_sel_hi:[1,0] neg_lo:[1,0] neg_hi:[1,0]"))
            s.append(I(f"v_pk_add_f32 v[{ep + i}:{ep + i + 1}], v[{p + i}:{p + i + 1}], v[{MX}:{MX + 1}] op_sel_hi:[1,0] neg_lo:[0,1] neg_hi:[0,1]"))
    for i in range(20):
        s += [I(f"v_exp_f32 v{ep + i}, v{ep + i}"), I(f"v_exp_f32 v{em + i}, v{em + i}")]
    s += [I(f"v_pk_add_f32 v[{MX}:{MX + 1}], v[{ep}:{ep + 1}], v[{ep + 2}:{ep + 3}]"), I(f"v_pk_add_f32 v[{MN}:{MN + 1}], v[{em}:{em + 1}], v[{em + 2}:{em + 3}]")]
    for i in range(4, 20, 2):
        s += [I(f"v_pk_add_f32 v[{MX}:{MX + 1}], v[{MX}:{MX + 1}], v[{ep + i}:{ep + i + 1}]"), I(f"v_pk_add_f32 v[{MN}:{MN + 1}], v[{MN}:{MN + 1}], v[{em + i}:{em + i + 1}]")]
    s += [I(f"v_add_f32 v{MX}, v{MX}, v{MX + 1}"), I(f"v_add_f32 v{MN}, v{MN}, v{MN + 1}"),
          I(f"v_rcp_f32 v{MX}, v{MX}"), I(f"v_rcp_f32 v{MN}, v{MN}")]
    for i in range(0, 20, 2):
        s.append(I(f"v_pk_mul_f32 v[{ep + i}:{ep + i + 1}], v[{ep + i}:{ep + i + 1}], v[{MX}:{MX + 1}] op_sel_hi:[1,0]"))
        s.append(I(f"v_pk_mul_f32 v[{em + i}:{em + i + 1}], v[{em + i}:{em + i + 1}], v[{MN}:{MN + 1}] op_sel_hi:[1,0]"))
    for i in range(10):
        s.append(I(f"v_cvt_pk_bf16_f32 v{dst + i}, v{ep + 2 * i}, v{ep + 2 * i + 1}"))
    for i in range(10):
        s.append(I(f"v_cvt_pk_bf16_f32 v{dst + 10 + i}, v{em + 2 * i}, v{em + 2 * i + 1}"))
    return s


def tail(out, st, joinvm):
    s = [Label("Ljoin"), I("s_nop 7")]
    s += stamp(5)
    tNON, tFL, tWA, tWB = 252, 253, 254, 255
    s += [I(f"v_mov_b32 v{d}, v{r}") for d, r in ((tNON, vNON), (tFL, vFL), (tWA, vW2A), (tWB, vW2B))]
    vQP, vKP, vF2 = 22, 23, 24
    vROW, vA0, vA1, vT = 25, 26, 27, 28
    s += L(f"""
    s_mul_i32 {sK1}, {sHH}, 5
    s_lshr_b32 {sK1}, {sK1}, 1               ; c0
    s_lshr_b32 {sT0}, {sK1}, 3
    s_add_u32 {sT1}, {sK1}, 2
    s_lshr_b32 {sT1}, {sT1}, 3
    s_sub_u32 {sT1}, {sT1}, {sT0}
    s_lshl_b32 {sT2}, {sRC}, 5
    s_add_u32 {sT0}, {sT0}, {sT2}
    s_add_u32 {sT0}, {sT0}, {F_Q}
    v_and_b32 v{vT}, 1, {vLANE}
    v_mul_u32_u24 v{vT}, {sT1}, v{vT}
    v_bfe_u32 v{vT + 1}, {vLANE}, 1, 1
    v_lshl_add_u32 v{vT}, v{vT + 1}, 4, v{vT}
    v_add_u32 v{vT}, {sT0}, v{vT}
    v_lshlrev_b32 v{vT}, 7, v{vT}
    v_add_u32 v{vQP}, 0x{WS_FLAGS:x}, v{vT}
    """)
    s += poll_issue(vQP, vF)
    s += L(f"""
    s_lshr_b32 {sT0}, {sHH}, 2
    s_lshl_b32 {sT0}, {sT0}, 4
    s_add_u32 {sT0}, {sT0}, {F_KV}
    v_and_b32 v{vT}, 15, {vLANE}
    v_add_u32 v{vT}, {sT0}, v{vT}
    v_lshlrev_b32 v{vT}, 7, v{vT}
    v_add_u32 v{vKP}, 0x{WS_FLAGS:x}, v{vT}
    s_lshl_b32 {sT0}, {sRC}, 4
    s_lshl_b32 {sT1}, {sWV}, 2
    s_add_u32 {sT0}, {sT0}, {sT1}
    v_lshrrev_b32 v{vT}, 4, {vLANE}
    v_add_u32 v{vT}, {sT0}, v{vT}
    s_mov_b32 {sT0}, {RT}
    v_mul_lo_u32 v{vT}, v{vT}, {sT0}
    v_add_u32 v{vT}, 0x{WS_ACT:x}, v{vT}
    v_and_b32 v{vT + 1}, 15, {vLANE}
    v_lshl_add_u32 v{vROW}, v{vT + 1}, 4, v{vT}
    v_lshl_add_u32 v{vT + 3}, v{vT + 1}, 3, v{vT}
    """)
    s += L(f"""
    s_and_b32 {sT0}, {sHH}, 1
    s_mul_i32 {sT0}, {sT0}, 160
    s_sub_u32 {sT0}, 0x{L_OW + 160:x}, {sT0}
    v_bfe_u32 v{vT}, {vLANE}, 2, 2
    v_mul_u32_u24 v{vT}, 40, v{vT}
    v_bfe_u32 v{vT + 1}, {vLANE}, 4, 1
    v_bfe_u32 v{vT + 2}, {vLANE}, 1, 1
    v_lshl_add_u32 v{vT + 1}, v{vT + 1}, 1, v{vT + 2}   ; q
    v_lshl_add_u32 v{vT}, v{vT + 1}, 3, v{vT}
    v_add_u32 v{vT}, {sT0}, v{vT}
    v_lshrrev_b32 v{vT + 2}, 5, {vLANE}
    v_and_b32 v{vA1}, 1, {vLANE}
    v_xor_b32 v{vT + 2}, v{vT + 2}, v{vA1}
    v_cmp_eq_u32 vcc, 0, v{vT + 2}
    v_mov_b32 v{vA1}, 0x{L_ZERO:x}
    v_or_b32 v{vT + 2}, v{vT + 2}, v{vT + 1}
    v_cndmask_b32 v{vA0}, v{vA1}, v{vT}, vcc
    v_cmp_eq_u32 vcc, 0, v{vT + 2}
    v_add_u32 v{vT}, 32, v{vT}
    s_nop 0
    v_cndmask_b32 v{vA1}, v{vA1}, v{vT}, vcc
    """)
    for tp in range(2):
        for p in range(3):
            for e in range(2):
                s.append(I(f"ds_read_b64_tr_b16 {ar(12 * tp + 4 * p + 2 * e, 2)}, v{vA0 if tp == 0 else vA1} offset:{(8 * p + 4 * e) * 40}"))
    s += [WaitVM(joinvm), I("s_barrier")] + publish(sFLL)
    c1, b1 = poll_check(vQP, vF)
    s += c1
    s += L(f"""
    s_lshl_b32 {sT0}, {sK1}, 8
    s_add_u32 {sT0}, {sT0}, {76 * 1024}
    """)
    s += b1
    for p in range(3):
        s.append(I(f"buffer_load_dwordx4 v[{72 + 4 * p}:{75 + 4 * p}], v{vROW}, {SWS}, {sT0} offen offset:{256 * p} sc1"))
    s += poll_issue(vKP, vF2)
    for n in range(10, 14):
        s += w2_loads(n)
    vPL, vTW = 64, 65
    s += L(f"""
    s_lshl_b32 {sT0}, {sWV}, 5
    v_and_b32 v{vT}, 31, {vLANE}
    v_add_u32 v{vT}, {sT0}, v{vT}             ; ch
    v_lshrrev_b32 v{vT + 1}, 5, {vLANE}       ; hp
    v_lshlrev_b32 v{vPL}, 4, v{vT}
    v_lshl_add_u32 v{vPL}, v{vT + 1}, 14, v{vPL}
    s_lshl_b32 {sT1}, {sHH}, 15
    s_add_u32 {sT1}, {sT1}, 0x{WS_KVP:x}
    v_add_u32 v{vPL}, {sT1}, v{vPL}
    """)
    s += L(f"""
    v_and_b32 v{vT + 2}, 15, v{vT}
    v_lshrrev_b32 v66, 4, v{vT}
    v_mul_u32_u24 v{vT + 2}, 80, v{vT + 2}
    v_lshl_add_u32 v{vT + 2}, v66, 4, v{vT + 2}
    v_lshl_add_u32 v{vTW}, v{vT + 1}, 3, v{vT + 2}   ; A0 form
    v_and_b32 v{vT + 2}, 7, v{vT}
    v_bfe_u32 v66, v{vT}, 3, 2
    v_mul_u32_u24 v{vT + 2}, 80, v{vT + 2}
    v_lshl_add_u32 v{vT + 2}, v66, 4, v{vT + 2}
    v_lshl_add_u32 v{vT + 2}, v{vT + 1}, 3, v{vT + 2}
    v_add_u32 v{vT + 2}, 1280, v{vT + 2}             ; A1 form
    v_cmp_le_u32 vcc, 64, v{vT}
    v_and_b32 v66, 15, v{vT}
    v_lshl_add_u32 v66, v66, 1, v{vT + 1}            ; rho (0..31)
    v_cndmask_b32 v{vTW}, v{vTW}, v{vT + 2}, vcc
    v_and_b32 v67, 15, v66
    v_mul_u32_u24 v67, 80, v67
    v_lshrrev_b32 v68, 4, v66
    v_lshl_add_u32 v67, v68, 3, v67
    v_add_u32 v67, 64, v67                           ; B0 form
    v_cmp_le_u32 vcc, 96, v{vT}
    v_and_b32 v68, 7, v66
    v_mul_u32_u24 v68, 80, v68
    v_cndmask_b32 v{vTW}, v{vTW}, v67, vcc
    v_bfe_u32 v67, v66, 3, 1
    v_lshl_add_u32 v68, v67, 3, v68
    v_add_u32 v68, {1280 + 64}, v68                  ; B1 form
    v_cmp_le_u32 vcc, 112, v{vT}
    v_mov_b32 v67, 2560
    s_nop 0
    v_cndmask_b32 v{vTW}, v{vTW}, v68, vcc
    v_cmp_le_u32 vcc, 120, v{vT}
    s_nop 1
    v_cndmask_b32 v{vTW}, v{vTW}, v67, vcc
    """)
    s += L(f"""
    v_bfe_u32 v{vT}, {vLANE}, 3, 2
    v_and_b32 v{vT + 1}, 3, {vLANE}
    v_lshl_add_u32 v{vT}, v{vT}, 2, v{vT + 1}
    v_mul_u32_u24 v{vT}, 80, v{vT}
    v_bfe_u32 v{vT + 1}, {vLANE}, 2, 1
    v_lshrrev_b32 v{vT + 2}, 5, {vLANE}
    v_cmp_eq_u32 vcc, v{vT + 1}, v{vT + 2}
    v_mov_b32 v{vA1}, 0x{L_ZERO:x}
    v_add_u32 v{vT + 1}, 1280, v{vT}
    v_cndmask_b32 v{vA0}, v{vA1}, v{vT}, vcc
    v_cndmask_b32 v{vA1}, v{vA1}, v{vT + 1}, vcc
    """)
    for tp in range(2):
        for p in range(3):
            c = "0" if p == 0 else vr(84 + 16 * tp, 16)
            s.append(I(f"v_mfma_f32_32x32x16_bf16 {vr(84 + 16 * tp, 16)}, {ar(12 * tp + 4 * p, 4)}, {vr(72 + 4 * p, 4)}, {c}"))
    c1, b1 = poll_check(vKP, vF2)
    s += c1 + [I("s_nop 3")] + b1
    for i in range(8):
        if i % 2 == 0:
            s.append(lit(sT0, i * 2048))
        s.append(I(f"buffer_load_dwordx4 v[{32 + 4 * i}:{35 + 4 * i}], v{vPL}, {SWS}, {sT0} offen offset:{(i & 1) * 2048} sc1"))
    s += stamp(6)
    s += softmax_pm(84, 84, 104, 2, False)
    s += L(f"""
    s_mov_b32 {sT0}, 0x3f80
    s_mov_b32 {sT1}, 0x3f800000
    """)
    SM = 72
    for i in range(8):
        for r in range(4):
            for hf in range(2):
                c = "0" if i == 0 else f"v{SM + 2 * r + hf}"
                s.append(I(f"v_dot2_f32_bf16 v{SM + 2 * r + hf}, v{32 + 4 * i + r}, {sT0 if hf == 0 else sT1}, {c}"))
    for i in range(4):
        s.append(I(f"v_permlane32_swap_b32 v{SM + i}, v{SM + 4 + i}"))
    for i in range(4):
        s.append(I(f"v_add_f32 v{SM + i}, v{SM + i}, v{SM + 4 + i}"))
    s += L(f"""
    v_cvt_pk_bf16_f32 v{SM}, v{SM}, v{SM + 1}
    v_cvt_pk_bf16_f32 v{SM + 1}, v{SM + 2}, v{SM + 3}
    ds_write_b64 v{vTW}, v[{SM}:{SM + 1}]
    s_waitcnt lgkmcnt(0)
    s_barrier
    """)
    for p in range(5):
        for tp in range(2):
            s.append(I(f"ds_read_b128 {ar(24 + 20 * tp + 4 * p, 4)}, v{vA0 if tp == 0 else vA1} offset:{16 * p}"))
    vAC = [66, 67, 68, 69]
    s += L(f"""
    s_lshr_b32 {sT0}, {sR2}, 1
    s_lshl_b32 {sT0}, {sT0}, 5
    s_add_u32 {sT0}, {sT0}, {F_ACT}
    s_lshl_b32 {sT0}, {sT0}, 7
    s_add_u32 {sU0B}, {sT0}, 0x{WS_FLAGS:x}
    v_min_u32 v{vT}, 13, {vLANE}
    v_lshlrev_b32 v{vT}, 7, v{vT}
    v_add_u32 v{vQP}, {sU0B}, v{vT}
    """)
    s += poll_issue(vQP, vF2)
    for p in range(5):
        for tp in range(2):
            c = "0" if p == 0 else vr(84 + 16 * tp, 16)
            s.append(I(f"v_mfma_f32_32x32x16_bf16 {vr(84 + 16 * tp, 16)}, {ar(24 + 20 * tp + 4 * p, 4)}, {vr(2 + 4 * p, 4)}, {c}"))
    s += L(f"""
    s_lshr_b32 {sT0}, {sHH}, 1
    s_add_u32 {sT0}, {sT0}, 56
    s_lshl_b32 {sT0}, {sT0}, 10
    s_and_b32 {sT1}, {sHH}, 1
    s_lshl_b32 {sT2}, {sT1}, 9
    s_add_u32 {sT0}, {sT0}, {sT2}
    s_lshl_b32 {sT1}, {sT1}, 7
    s_lshr_b32 {sT2}, {sHH}, 1
    s_lshl_b32 {sT2}, {sT2}, 8
    s_add_u32 {sT1}, {sT1}, {sT2}
    s_add_u32 {sT1}, {sT1}, {72 * 1024}
    s_lshl_b32 {sT2}, {sRC}, 5
    s_add_u32 {sT2}, {sT2}, {sHH}
    s_add_u32 {sT2}, {sT2}, {F_O}
    s_lshl_b32 {sT2}, {sT2}, 7
    s_add_u32 {sFL0}, {sT2}, 0x{WS_FLAGS:x}
    v_add_f32 v104, 0x358637bd, v104
    v_rcp_f32 v104, v104
    v_mul_f32 v104, 0x{LOG2E:x}, v104
    """)
    for i in range(0, 20, 2):
        s.append(I(f"v_pk_mul_f32 v[{84 + i}:{85 + i}], v[{84 + i}:{85 + i}], v[104:105] op_sel_hi:[1,0]"))
    for i in range(10):
        s.append(I(f"v_cvt_pk_bf16_f32 v{2 + i}, v{84 + 2 * i}, v{85 + 2 * i}"))
    ost = L(f"""
    buffer_store_dwordx4 v[2:5], v{vROW}, {SWS}, {sT0} offen sc1
    buffer_store_dwordx4 v[6:9], v{vROW}, {SWS}, {sT0} offen offset:256 sc1
    buffer_store_dwordx2 v[10:11], v{vT + 3}, {SWS}, {sT1} offen sc1
    """)
    s += ost
    s += stamp(7)
    vAC = [12, 13, 14, 15]
    vAR = [16, 17, 18, 19]
    vXO = [25, 26, 27]
    s += L(f"""
    s_mul_i32 {sT0}, {sR2}, {4 * RT}
    s_lshl_b32 {sT1}, {sWV}, 10
    s_add_u32 {sT0}, {sT0}, {sT1}
    s_add_u32 {sT0}, {sT0}, 0x{WS_ACT:x}
    v_lshlrev_b32 v{vT}, 4, {vLANE}
    v_add_u32 v{vAC[0]}, {sT0}, v{vT}
    v_add_u32 v{vAC[1]}, {RT}, v{vAC[0]}
    v_add_u32 v{vAC[2]}, {2 * RT}, v{vAC[0]}
    v_add_u32 v{vAC[3]}, {3 * RT}, v{vAC[0]}
    """)
    c1, b1 = poll_check(vQP, vF2)
    s += c1 + [I("s_nop 3")] + b1
    ARING = [32 + 16 * i for i in range(6)]

    def act_loads(n):
        d = ARING[n % 6]
        if n < 18:
            return [lit(sT2, n * 4096)] + [I(f"buffer_load_dwordx4 v[{d + 4 * r}:{d + 4 * r + 3}], v{vAC[r]}, {SWS}, {sT2} offen sc1") for r in range(4)]
        o = []
        for r in range(4):
            o.append(I(f"buffer_load_dwordx2 v[{d + 4 * r}:{d + 4 * r + 1}], v{vAR[r]}, {SWS}, 0 offen sc1"))
            o.append(I(f"buffer_load_dwordx2 v[{d + 4 * r + 2}:{d + 4 * r + 3}], v{vAR[r]}, {SWS}, 0 offen offset:128 sc1"))
        return o
    for n in range(3):
        s += act_loads(n)
    s += [WaitVM(ost), I("s_barrier")] + publish(sFL0, tNON, tFL)
    for n in range(3, 5):
        s += act_loads(n)
    s += L(f"""
    s_add_u32 {sT0}, {sT0}, {72 * 1024}
    v_lshrrev_b32 v{vT}, 4, {vLANE}
    v_and_b32 v{vT + 1}, 15, {vLANE}
    v_lshlrev_b32 v{vT + 1}, 3, v{vT + 1}
    v_lshl_add_u32 v{vT}, v{vT}, 8, v{vT + 1}
    v_add_u32 v{vAR[0]}, {sT0}, v{vT}
    v_add_u32 v{vAR[1]}, {RT}, v{vAR[0]}
    v_add_u32 v{vAR[2]}, {2 * RT}, v{vAR[0]}
    v_add_u32 v{vAR[3]}, {3 * RT}, v{vAR[0]}
    """)
    vPB, vPC, vPD = 20, 21, 22
    s += L(f"""
    v_min_u32 v{vT}, 3, {vLANE}
    v_add_u32 v{vT}, 14, v{vT}
    v_lshlrev_b32 v{vT}, 7, v{vT}
    v_add_u32 v{vPB}, {sU0B}, v{vT}
    v_min_u32 v{vT}, 8, {vLANE}
    v_add_u32 v{vT}, 18, v{vT}
    v_lshlrev_b32 v{vT}, 7, v{vT}
    v_add_u32 v{vPC}, {sU0B}, v{vT}
    s_lshr_b32 {sT0}, {sR2}, 2
    s_lshl_b32 {sT0}, {sT0}, 5
    s_add_u32 {sT0}, {sT0}, {F_O}
    s_lshl_b32 {sT0}, {sT0}, 7
    s_add_u32 {sT0}, {sT0}, 0x{WS_FLAGS:x}
    v_and_b32 v{vT}, 31, {vLANE}
    v_lshlrev_b32 v{vT}, 7, v{vT}
    v_add_u32 v{vPD}, {sT0}, v{vT}
    """)
    vLR = [28, 29, 30]
    xo = L(f"""
    s_mul_i32 {sT0}, {sR2}, {64 * 1280}
    s_mul_i32 {sT1}, {sCG}, 160
    s_add_u32 {sT0}, {sT0}, {sT1}
    """)
    for i in range(3):
        xo += L(f"""
        v_add_u32 v2, {256 * i}, v0
        v_min_u32 v3, 639, v2
        v_mul_u32_u24 v4, 6554, v3
        v_lshrrev_b32 v4, 16, v4
        v_mul_u32_u24 v5, 10, v4
        v_sub_u32 v5, v3, v5
        v_mul_u32_u24 v6, 1280, v4
        v_lshl_add_u32 v6, v5, 4, v6
        v_add_u32 v{vXO[i]}, {sT0}, v6
        v_mul_u32_u24 v6, 336, v4
        v_lshl_add_u32 v{vLR[i]}, v5, 4, v6
        """)
        if i == 2:
            xo += L(f"""
            v_cmp_gt_u32 vcc, 640, v2
            v_mov_b32 v6, 0x{OOB:x}
            s_nop 0
            v_cndmask_b32 v{vXO[i]}, v6, v{vXO[i]}, vcc
            """)
    s += xo
    s += stamp(8)
    sides = {n: [] for n in range(19)}
    chk = {}
    def addpoll(n_issue, n_check, a):
        sides[n_issue] += poll_issue(a, vF2)
        c1, b1 = poll_check(a, vF2)
        chk[n_check] = (c1, b1)
    addpoll(0, 2, vPB)
    addpoll(3, 4, vPC)
    addpoll(11, 12, vPD)
    issue_at = {n: n - 5 for n in range(5, 14)}
    issue_at.update({14: 12, 15: 12, 16: 12, 17: 13, 18: 13})
    w2_at = {14: 1, 15: 2, 16: 3, 17: 4, 18: 5}
    for n in range(19):
        pre = []
        if n in chk:
            pre = chk[n][0] + [I("s_nop 3")] + chk[n][1]
        ld = []
        for m in range(5, 19):
            if issue_at[m] == n:
                ld += act_loads(m)
        for m in range(14, 19):
            if w2_at[m] == n:
                ld += w2_loads(m, sT3, tWA, tWB)
        if n == 14:
            ld += [I(f"buffer_load_dwordx4 v[{2 + 4 * i}:{5 + 4 * i}], v{vXO[i]}, {SX}, 0 offen") for i in range(2)]
            ld += [I(f"buffer_load_dwordx4 v[248:251], v{vXO[2]}, {SX}, 0 offen")]
        f, b = W2REG[n]
        d = ARING[n % 6]
        groups = []
        for r in range(4):
            for ct in range(5):
                a = 4 * (5 * r + ct)
                c = "0" if n == 0 else ar(a, 4)
                groups.append([I(f"v_mfma_f32_16x16x32_bf16 {ar(a, 4)}, {f}[{b + 4 * ct}:{b + 4 * ct + 3}], {vr(d + 4 * r, 4)}, {c}")])
        if n == 13:
            s += pre + sides[n] + ld
            st = out.emit(s, st)
            s = []
            probe = [I(f"v_mov_b32 v31, v{d + 15}")]
            st = out.emit(probe + [I(f"s_cmp_ge_u32 {sWV}, 2"), I("s_cbranch_scc1 Lskip13")], st)
            st = out.emit([g[0] for g in groups], st)
            st = out.emit([Label("Lskip13"), I("s_nop 1")], st)
            continue
        s += pre
        body, rest = merge(groups, sides[n] + ld, budget=8, start=1)
        s += body + rest
    s += stamp(9)
    WSZ = 64 * 336
    s += L(f"""
    v_and_b32 v12, 15, {vLANE}
    v_mul_u32_u24 v12, 336, v12
    v_lshrrev_b32 v13, 5, {vLANE}
    v_lshl_add_u32 v12, v13, 4, v12
    v_bfe_u32 v13, {vLANE}, 4, 1
    v_mul_u32_u24 v13, 160, v13
    s_mul_i32 {sT0}, {sWV}, {WSZ}
    v_add3_u32 v12, v12, v13, {sT0}
    """)
    for r in range(4):
        for ct in range(5):
            a = 4 * (5 * r + ct)
            s.append(I(f"ds_write_b128 v12, {ar(a, 4)} offset:{r * 16 * 336 + ct * 32}"))
    s += L("""
    s_waitcnt lgkmcnt(0)
    s_barrier
    """)
    for i in range(3):
        for w in range(4):
            for hf in range(2):
                d = 32 + 32 * i + 8 * w + 4 * hf
                off = w * WSZ + hf * 160
                if off < 65536:
                    s.append(I(f"ds_read_b128 v[{d}:{d + 3}], v{vLR[i]} offset:{off}"))
                else:
                    raise ValueError
    s += [lit(sT0, LN2)]
    XR = [2, 6, 248]
    for i in range(3):
        b = 32 + 32 * i
        for j in range(0, 8, 2):
            s.append(I(f"v_pk_add_f32 v[{b + j}:{b + j + 1}], v[{b + j}:{b + j + 1}], v[{b + 8 + j}:{b + 9 + j}]"))
            s.append(I(f"v_pk_add_f32 v[{b + 16 + j}:{b + 17 + j}], v[{b + 16 + j}:{b + 17 + j}], v[{b + 24 + j}:{b + 25 + j}]"))
        for j in range(0, 8, 2):
            s.append(I(f"v_pk_add_f32 v[{b + j}:{b + j + 1}], v[{b + j}:{b + j + 1}], v[{b + 16 + j}:{b + 17 + j}]"))
        for j in range(4):
            s.append(I(f"v_lshlrev_b32 v{b + 8 + 2 * j}, 16, v{XR[i] + j}"))
            s.append(I(f"v_and_b32 v{b + 9 + 2 * j}, 0xffff0000, v{XR[i] + j}"))
        for j in range(8):
            s.append(I(f"v_fma_f32 v{b + j}, v{b + j}, {sT0}, v{b + 8 + j}"))
        for j in range(4):
            s.append(I(f"v_cvt_pk_bf16_f32 v{b + 16 + j}, v{b + 2 * j}, v{b + 2 * j + 1}"))
        s.append(I(f"buffer_store_dwordx4 v[{b + 16}:{b + 19}], v{vXO[i]}, {SOUT}, 0 offen"))
    s += stamp(10)
    if OPT["stamps"]:
        s += L(f"""
        s_waitcnt vmcnt(0)
        """) + stamp(11) + L(f"""
        s_lshl_b32 {sT0}, s2, 8
        s_lshl_b32 {sT1}, {sWV}, 6
        s_add_u32 {sT0}, {sT0}, {sT1}
        s_add_u32 {sT0}, {sT0}, 0x{WS_DBG:x}
        v_cmp_eq_u32 vcc, 0, {vLANE}
        v_mov_b32 v3, 0x{OOB:x}
        v_mov_b32 v2, 0
        v_cndmask_b32 v2, v3, v2, vcc
        buffer_store_dwordx4 a[240:243], v2, {SWS}, {sT0} offen
        buffer_store_dwordx4 a[244:247], v2, {SWS}, {sT0} offen offset:16
        buffer_store_dwordx4 a[248:251], v2, {SWS}, {sT0} offen offset:32
        buffer_store_dwordx4 a[252:255], v2, {SWS}, {sT0} offen offset:48
        """)
    if OPT["probe"] >= 0:
        s += L(f"""
        s_cmp_lg_u32 s2, {OPT['probewg']}
        s_cbranch_scc1 Lnoprobe
        v_accvgpr_read_b32 v2, a{240 + OPT['probe']}
        v_accvgpr_read_b32 v3, a240
        v_accvgpr_read_b32 v4, a251
        v_sub_u32 v2, v2, v3
        v_min_u32 v2, 5000, v2
        v_lshl_add_u32 v2, v2, 2, v4
        v_readfirstlane_b32 {sT0}, v2
        """)
        s += [Raw(f"""Lprobe:
    s_memrealtime s[100:101]
    s_waitcnt lgkmcnt(0)
    s_sub_u32 s100, s100, {sT0}
    s_cmp_lt_i32 s100, 0
    s_cbranch_scc1 Lprobe"""), Label("Lnoprobe")]
    s += L(f"""
    s_cmp_lg_u32 s2, 0
    s_cbranch_scc1 Lend
    v_lshlrev_b32 v2, 7, v0
    v_add_u32 v2, 0x{WS_FLAGS + F_PREP * 128:x}, v2
    """)
    s += poll_issue(2, 3)
    c1, b1 = poll_check(2, 3)
    s += c1 + b1
    s += L(f"""
    v_cmp_eq_u32 vcc, 0, v0
    v_mov_b32 v2, 0x{OOB:x}
    v_mov_b32 v3, {sNON}
    s_barrier
    v_cndmask_b32 v2, v2, 0, vcc
    buffer_store_dword v3, v2, {SWS}, 0 offen sc1
    """)
    s += [Label("Lend"), I("s_endpgm")]
    st = out.emit(s, st)
    return st


def main():
    out = Out()
    st = State()
    e, cdma = entry()
    e += [I(f"s_cmp_ge_u32 {sY}, 16"), I("s_cbranch_scc1 LroleM")]
    st = out.emit(e, st)
    stM = st.copy()
    stK = role_KV(out, st, cdma)
    out.emit([I("s_branch Ljoin")], stK)
    sts = role_M(out, stM, cdma)
    j, pv = join_states([stK] + sts)
    tail(out, j, pv)
    hdr = open(os.path.join(os.path.dirname(os.path.abspath(__file__)), "..", "cdna_kernels", NAME + ".s.ref")).read().split("\n")
    head = [l for l in hdr if l.startswith(";") and "@launch" not in l]
    txt = "\n".join(head) + f"\n; @launch grid=(256,1,1) block=(256,1,1) lds={LDS_SIZE}\n"
    txt += f""".amdgcn_target "amdgcn-amd-amdhsa--gfx950"
.text
.globl {NAME}_kernel
.p2align 8
.type {NAME}_kernel,@function
{NAME}_kernel:
"""
    txt += out.text()
    txt += "\n".join(slow_paths) + "\n"
    txt += f""".section .rodata,"a"
.p2align 6
.amdhsa_kernel {NAME}_kernel
  .amdhsa_next_free_vgpr 512
  .amdhsa_next_free_sgpr 102
  .amdhsa_accum_offset 256
  .amdhsa_group_segment_fixed_size 0
  .amdhsa_kernarg_size 88
  .amdhsa_user_sgpr_count 2
  .amdhsa_user_sgpr_kernarg_segment_ptr 1
  .amdhsa_system_sgpr_workgroup_id_x 1
.end_amdhsa_kernel
"""
    dst = sys.argv[1] if len(sys.argv) > 1 else "cdna_kernels/" + NAME + ".s"
    open(dst, "w").write(txt)
    print(f"wrote {dst}: {out.count} instrs, {out.nops} nops, {out.waits} waits")


main()
```

```python
import re

TRANS = ("v_exp_f32", "v_log_f32", "v_rcp_f32", "v_rsq_f32", "v_sqrt_f32", "v_sin_f32", "v_cos_f32", "v_rcp_iflag_f32")
REG = re.compile(r"^(-|\|)?(abs\()?([vas])(\d+|\[(\d+):(\d+)\])\)?\|?$")


def regs_of(tok):
    tok = tok.strip()
    if tok in ("vcc", "exec"):
        return {(tok, 0), (tok, 1)}
    if tok in ("vcc_lo", "exec_lo"):
        return {(tok[:-3], 0)}
    if tok in ("vcc_hi", "exec_hi"):
        return {(tok[:-3], 1)}
    if tok == "m0":
        return {("m0", 0)}
    m = REG.match(tok)
    if not m:
        return set()
    f = m.group(3)
    if m.group(5) is not None:
        return {(f, i) for i in range(int(m.group(5)), int(m.group(6)) + 1)}
    return {(f, int(m.group(4)))}


class Inst:
    __slots__ = ("text", "op", "reads", "writes", "kind", "cost", "srcc", "passes", "dpp", "wide_store", "on", "tag", "sdata")

    def __init__(self, text, kind=None, on=None, tag=None):
        self.text = text
        self.on = on
        self.tag = tag
        self.reads = set()
        self.writes = set()
        self.srcc = set()
        self.sdata = set()
        self.passes = 0
        self.dpp = False
        self.wide_store = False
        self.cost = 4
        if kind is not None:
            self.kind = kind
            self.op = kind
            self.cost = 0
            return
        parts = text.split(None, 1)
        op = parts[0]
        self.op = op
        rest = parts[1] if len(parts) > 1 else ""
        ops = []
        depth = 0
        cur = ""
        for ch in rest:
            if ch == "[":
                depth += 1
            if ch == "]":
                depth -= 1
            if ch == "," and depth == 0:
                ops.append(cur.strip())
                cur = ""
            else:
                cur += ch
        if cur.strip():
            ops.append(cur.strip())
        mods = ""
        if ops:
            last = ops[-1].split(None, 1)
            ops[-1] = last[0]
            mods = last[1] if len(last) > 1 else ""
        R = [regs_of(o) for o in ops]
        allr = lambda lst: set().union(*lst) if lst else set()
        if op.startswith("v_mfma"):
            self.kind = "mfma"
            self.writes = R[0]
            self.reads = R[1] | R[2] | R[3]
            self.srcc = R[3]
            self.passes = 8 if "32x32" in op else 4
            self.cost = 8
        elif op.startswith("v_"):
            self.kind = "valu"
            if any(op.startswith(t) for t in TRANS):
                self.kind = "trans"
                self.cost = 8
            if op.startswith("v_dot2"):
                self.kind = "dot"
            if op.startswith("v_permlane") and "swap" in op:
                self.writes = R[0] | R[1]
                self.reads = R[0] | R[1]
            elif op.startswith("v_add_co") or op.startswith("v_sub_co") or op.startswith("v_addc_co"):
                self.writes = R[0] | R[1]
                self.reads = allr(R[2:])
            else:
                self.writes = R[0]
                self.reads = allr(R[1:])
                if op.startswith("v_fmac") or op.startswith("v_dot2c") or op.startswith("v_writelane"):
                    self.reads |= R[0]
            if "quad_perm" in mods or "row_" in mods or "wave_" in mods:
                self.dpp = True
                self.reads |= R[0]
            if op.startswith("v_cmpx"):
                raise ValueError("avoid v_cmpx")
        elif op.startswith("ds_"):
            self.kind = "ds"
            if op.startswith("ds_read") or op.startswith("ds_bpermute") or op.startswith("ds_swizzle"):
                self.writes = R[0]
                self.reads = allr(R[1:])
            else:
                self.reads = allr(R)
        elif op.startswith("buffer_") or op.startswith("global_"):
            self.kind = "vm"
            words = mods.split()
            if op.startswith("buffer_load"):
                if "lds" in words:
                    self.reads = allr(R) | {("m0", 0)}
                    self.kind = "vm"
                    self.tag = self.tag or "dma"
                else:
                    self.writes = R[0]
                    self.reads = allr(R[1:])
            elif op.startswith("buffer_store"):
                self.reads = allr(R)
                self.sdata = R[0]
                self.wide_store = op.endswith("x4") or op.endswith("x3")
            else:
                raise ValueError("unsupported vm op " + op)
        elif op.startswith("s_load") or op.startswith("s_memrealtime") or op.startswith("s_memtime"):
            self.kind = "smem"
            self.writes = R[0]
            self.reads = allr(R[1:])
        elif op.startswith("s_"):
            self.kind = "salu"
            if op in ("s_waitcnt", "s_barrier", "s_nop", "s_endpgm", "s_setprio", "s_sleep", "s_branch") or op.startswith("s_cbranch"):
                if op == "s_cbranch_vccz" or op == "s_cbranch_vccnz":
                    self.reads = {("vcc", 0), ("vcc", 1)}
            elif op.startswith("s_cmp") or op.startswith("s_bitcmp"):
                self.reads = allr(R)
            else:
                self.writes = R[0]
                self.reads = allr(R[1:])
                if "saveexec" in op:
                    self.writes |= {("exec", 0), ("exec", 1)}
                if op in ("s_addk_i32", "s_mulk_i32"):
                    self.reads |= R[0]
        else:
            raise ValueError("unknown op " + text)

    def __repr__(self):
        return self.text


def I(text, tag=None):
    return Inst(text, tag=tag)


def L(txt):
    out = []
    for ln in txt.strip().split("\n"):
        ln = ln.split(";")[0].strip()
        if ln:
            m = re.match(r"s_cselect_b32 (\S+), (0x[0-9a-f]+|\d+), (0x[0-9a-f]+|\d+)$", ln)
            if m and int(m.group(2), 0) > 64 and int(m.group(3), 0) > 64 and m.group(3) != "0xbf800000":
                out.append(Inst(f"s_mov_b32 {m.group(1)}, {m.group(3)}"))
                ln = f"s_cselect_b32 {m.group(1)}, {m.group(2)}, {m.group(1)}"
            out.append(Inst(ln))
    return out


def WaitVM(on):
    if isinstance(on, Inst):
        on = [on]
    return Inst("<waitvm>", kind="waitvm", on=list(on))


def WaitLG(on):
    if isinstance(on, Inst):
        on = [on]
    return Inst("<waitlg>", kind="waitlg", on=list(on))


def Label(name):
    return Inst(name + ":", kind="label")


def Raw(text):
    return Inst(text, kind="raw")


def Comment(text):
    return Inst("; " + text, kind="comment")


class State:
    def __init__(self):
        self.vm = []
        self.lg = []
        self.hist = []

    def copy(self):
        s = State()
        s.vm = list(self.vm)
        s.lg = list(self.lg)
        s.hist = list(self.hist)
        return s


def is_valu(i):
    return i.kind in ("valu", "trans", "dot")


def vregs(s):
    return {r for r in s if r[0] in ("v", "a")}


def sregs(s):
    return {r for r in s if r[0] in ("s", "vcc")}


def need_states(p, c):
    n = 0
    cr, cw = c.reads, c.writes
    if p.kind == "mfma":
        D = p.writes
        big = 12 if p.passes == 8 else 8
        if c.kind == "mfma":
            if D & (c.reads - c.srcc) or (D & c.srcc and D & (c.reads - c.srcc)):
                n = max(n, big)
            ab = c.reads - c.srcc
            if D & ab:
                n = max(n, big)
            if D & c.srcc:
                if not (c.srcc == D and c.passes == p.passes):
                    n = max(n, big - 2)
            elif D & c.writes:
                n = max(n, big)
        elif is_valu(c) or c.kind in ("ds", "vm"):
            if D & (cr | cw):
                n = max(n, big)
        if is_valu(c) and p.srcc & cw:
            n = max(n, 7 if p.passes == 8 else 3)
    elif is_valu(p):
        pv = vregs(p.writes)
        ps = sregs(p.writes)
        if c.kind == "mfma" and pv & cr:
            n = max(n, 2)
        if p.kind == "trans" and is_valu(c) and c.kind != "trans" and pv & cr:
            n = max(n, 1)
        if p.kind == "trans" and c.kind in ("ds", "vm") and pv & cr:
            n = max(n, 1)
        if p.kind == "dot":
            if is_valu(c) or c.kind in ("mfma", "ds", "vm"):
                if pv & (cr | cw):
                    same = c.kind == "dot" and c.op == p.op
                    if same:
                        toks = c.text.split(None, 1)[1].split(",")
                        ab = regs_of(toks[1].strip()) | regs_of(toks[2].strip())
                        if pv & ab:
                            n = max(n, 3)
                    else:
                        n = max(n, 3)
        if is_valu(c):
            if ps & cr:
                n = max(n, 2)
                if c.op.startswith("v_readlane") or c.op.startswith("v_writelane"):
                    n = max(n, 4)
            if c.dpp and pv & cr:
                n = max(n, 2)
            if c.op.startswith("v_permlane") and pv & cr:
                n = max(n, 2)
            if (c.op.startswith("v_readfirstlane") or c.op.startswith("v_readlane")) and pv & cr:
                n = max(n, 1)
        if c.kind == "vm" and ps & cr:
            n = max(n, 5)
        if c.kind == "salu" and ps & cr:
            n = max(n, 4)
            if c.op.startswith("s_cbranch_vcc"):
                n = max(n, 5)
    elif p.kind == "salu":
        if ("m0", 0) in p.writes and c.kind == "vm" and ("m0", 0) in cr:
            n = max(n, 1)
        if ("exec", 0) in p.writes and (c.dpp or c.kind == "mfma"):
            n = max(n, 4)
    elif p.kind == "vm":
        if p.wide_store and p.sdata & cw:
            n = max(n, 2)
    return n


class Out:
    def __init__(self):
        self.lines = []
        self.nops = 0
        self.waits = 0
        self.count = 0
        self.done = set()

    def emit(self, seq, st):
        for ins in seq:
            k = ins.kind
            if k in ("label", "comment"):
                self.lines.append(ins.text)
                continue
            if k == "raw":
                self.lines.append("    s_nop 7")
                self.lines.append(ins.text)
                self.lines.append("    s_nop 7")
                st.hist = []
                continue
            nv = None
            nl = None
            if k in ("waitvm", "waitlg"):
                for o in ins.on:
                    assert o in self.done or o.kind.startswith("join") or o.kind == "smem", f"wait on instruction not yet emitted: {o}"
            else:
                assert ins not in self.done or ins.kind == "mfma", f"emitted twice: {ins}"
                self.done.add(ins)
            if k == "waitvm":
                idx = max([st.vm.index(o) for o in ins.on if o in st.vm], default=-1)
                if idx >= 0:
                    nv = len(st.vm) - 1 - idx
            elif k == "waitlg":
                idx = max([st.lg.index(o) for o in ins.on if o in st.lg], default=-1)
                if idx >= 0:
                    nl = len(st.lg) - 1 - idx
            else:
                touch = ins.reads | ins.writes
                for j in range(len(st.vm) - 1, -1, -1):
                    if st.vm[j].writes & touch:
                        nv = len(st.vm) - 1 - j
                        break
                for j in range(len(st.lg) - 1, -1, -1):
                    if st.lg[j].writes & touch:
                        nl = len(st.lg) - 1 - j
                        break
            if nl is not None and any(o.kind == "smem" for o in st.lg):
                nl = 0
            if nv is not None or nl is not None:
                t = "s_waitcnt"
                if nv is not None:
                    nv = min(nv, 63)
                    t += f" vmcnt({nv})"
                    st.vm = st.vm[len(st.vm) - nv:] if nv else []
                if nl is not None:
                    nl = min(nl, 15)
                    t += f" lgkmcnt({nl})"
                    st.lg = st.lg[len(st.lg) - nl:] if nl else []
                self.lines.append("    " + t)
                self.waits += 1
                self.count += 1
                st.hist.append((Inst(t), 1))
            if k in ("waitvm", "waitlg"):
                continue
            dist = 0
            pad = 0
            for p, w in reversed(st.hist):
                req = need_states(p, ins)
                if req > dist:
                    pad = max(pad, req - dist)
                dist += w
                if dist >= 12:
                    break
            while pad > 0:
                n = min(pad, 16)
                self.lines.append(f"    s_nop {n - 1}")
                st.hist.append((Inst("s_nop 0"), n))
                self.nops += 1
                self.count += 1
                pad -= n
            self.lines.append("    " + ins.text)
            self.count += 1
            w = 1
            if ins.op == "s_nop":
                w = int(ins.text.split()[1]) + 1
            st.hist.append((ins, w))
            if len(st.hist) > 24:
                st.hist = st.hist[-16:]
            if ins.op == "s_waitcnt":
                m = re.search(r"vmcnt\((\d+)\)", ins.text)
                if m:
                    n = int(m.group(1))
                    st.vm = st.vm[len(st.vm) - n:] if n and n < len(st.vm) else (st.vm if n else [])
                m = re.search(r"lgkmcnt\((\d+)\)", ins.text)
                if m:
                    n = int(m.group(1))
                    st.lg = st.lg[len(st.lg) - n:] if n and n < len(st.lg) else (st.lg if n else [])
            if k == "vm":
                st.vm.append(ins)
            elif k in ("ds", "smem"):
                st.lg.append(ins)
        return st

    def text(self):
        return "\n".join(self.lines) + "\n"


def join_states(states):
    s = State()
    pv = Inst("<joinvm>", kind="joinvm")
    pl = Inst("<joinlg>", kind="joinlg")
    for t in states:
        for o in t.vm:
            pv.writes |= o.writes
        for o in t.lg:
            pl.writes |= o.writes
            if o.kind == "smem":
                pl.kind = "smem"
    s.vm = [pv]
    s.lg = [pl]
    return s, pv


def merge(main, side, budget=24, start=0, maxside=None):
    out = []
    si = 0
    debt = 0
    for gi, g in enumerate(main):
        out.extend(g)
        if gi < start:
            continue
        used = sum(i.cost for i in g if i.kind != "mfma")
        room = budget - used - debt
        debt = 0
        while si < len(side):
            c = side[si].cost
            if c > room and not (c == 0):
                if room >= c / 2 and c > 0:
                    debt = c - room
                    out.append(side[si])
                    si += 1
                break
            out.append(side[si])
            room -= c
            si += 1
    return out, side[si:]


SCC_W = ("s_cmp", "s_add_", "s_sub_", "s_addc", "s_subb", "s_and_", "s_or_", "s_xor_", "s_lshl", "s_lshr", "s_ashr", "s_bfe", "s_min", "s_max", "s_bitcmp", "s_andn2", "s_not", "s_addk", "s_abs")
SCC_R = ("s_cselect", "s_cbranch_scc", "s_addc", "s_subb", "s_cmov")


def cost_of(i):
    if i.kind == "ds":
        return 5.5
    if i.kind == "vm":
        return 8
    return i.cost


def bundles(insts):
    n = len(insts)
    glue = [False] * n
    lastscc = lastvcc = None
    for i, x in enumerate(insts):
        if x.kind in ("salu",) and x.op.startswith(SCC_R) and lastscc is not None:
            for j in range(lastscc + 1, i + 1):
                glue[j] = True
        if (("vcc", 0) in x.reads) and lastvcc is not None:
            for j in range(lastvcc + 1, i + 1):
                glue[j] = True
        if x.kind == "label" or x.kind in ("waitvm", "waitlg") and False:
            glue[i] = True
        if x.kind == "salu" and x.op.startswith(SCC_W):
            lastscc = i
        if ("vcc", 0) in x.writes:
            lastvcc = i
    out = []
    for i, x in enumerate(insts):
        if out and (glue[i] or out[-1][-1].kind in ("waitvm", "waitlg")):
            out[-1].append(x)
        else:
            out.append([x])
    return out


def vm_items(insts):
    out, cur = [], []
    for x in insts:
        cur.append(x)
        if x.kind == "vm":
            out.append(cur)
            cur = []
    if cur:
        if out:
            out[-1] += cur
        else:
            out.append(cur)
    return out


class Sched:
    def __init__(self):
        self.main = []
        self.att = []
        self.placed = []

    def add(self, insts):
        self.main.append(list(insts))
        self.att.append([])
        return len(self.main) - 1

    def place(self, items, g0, g1, even=False):
        if not items:
            return
        assert 0 <= g0 < g1 <= len(self.main), (g0, g1, len(self.main))
        ign = {("vcc", 0), ("vcc", 1), ("m0", 0)}
        wr = set().union(*[x.writes for b in items for x in b]) - ign
        rd = set().union(*[x.reads for b in items for x in b]) - ign
        for (a, b_, w2, r2) in self.placed:
            if a < g1 and g0 < b_:
                clash = (wr & (w2 | r2)) | (rd & w2)
                assert not clash, f"streams over [{a},{b_}) and [{g0},{g1}) share {sorted(clash)}"
        self.placed.append((g0, g1, wr, rd))
        w = [1.0 if even else max(sum(cost_of(x) for x in b), 0.01) for b in items]
        tot = sum(w)
        acc = 0.0
        for b, c in zip(items, w):
            g = g0 + int((acc + (0 if even else c / 2)) / tot * (g1 - g0))
            self.att[min(g, g1 - 1)].append(b)
            acc += c

    def at(self, g, insts):
        self.place([list(insts)], g, g + 1)

    def flat(self, g0=0, g1=None):
        out = []
        for g in range(g0, len(self.main) if g1 is None else g1):
            out += self.main[g]
            for b in self.att[g]:
                out += b
        return out

    def report(self, name, marks):
        for (a, b, nm) in marks:
            c = [8 + sum(cost_of(x) for x in self.main[g] if x.kind != "mfma") + sum(cost_of(x) for bb in self.att[g] for x in bb) for g in range(a, b)]
            v = sum(1 for g in range(a, b) for x in self.flat(g, g + 1) if x.kind == "vm")
            print(f"  {name} {nm}: groups {b - a} est {sum(max(32, x) for x in c):.0f} clk (issue {sum(c):.0f}, max {max(c):.0f}) vmem {v}")


def weave(code, items, every):
    out = []
    acc = 0
    items = list(items)
    for b in bundles(code):
        out += b
        acc += sum(cost_of(x) for x in b)
        while items and acc >= every:
            out += items.pop(0)
            acc -= every
    for it in items:
        out += it
    return out
```

```python
import sys, os
sys.path.insert(0, os.path.dirname(os.path.abspath(__file__)))
from asm import *

NAME = "parallel_sum__linear_kernel_hedgehog__dense_activation_mish__prompt"
OPT = dict(stamps=False, spin=20000, probe=-1, probewg=0)
MARKS = []
for a in sys.argv[2:]:
    k, v = a.split("=")
    if k == "marks":
        MARKS = v.split(",")
        OPT["stamps"] = 1
    else:
        OPT[k] = int(v)

WS_FLAGS = 0x10000
WS_STATS = 0x40000
WS_COLS = 0x50000
WS_KVP = 0x100000
WS_W2F = 0x200000
WS_ACT = 0x500000
WS_DBG = 0x1100000
WS_SIZE = 0x1200000
RT = 96 * 1024
F_PREP, F_W2, F_ACT, F_Q, F_KV, F_O = 0, 256, 384, 896, 1152, 1280
OOB = 0x80000000
LOG2E = 0x3FB8AA3B
LN2 = 0x3F317218
LDS_SIZE = 163840
L_CB_M = 131072
L_KR = 65536
L_CB_KV = L_KR + 3 * 20480
L_EX = 81920
L_WPH = 151552
L_OW = 155648
L_ZERO = 156672
L_AUG = 159744
SX, SWQ, SW1, SWS, SOUT, SU1, SU3, SB1, SPH, SR = ["s[%d:%d]" % (i, i + 3) for i in range(28, 68, 4)]
sWV, sRB, sG, sLQ, sNON, sT0, sT1, sT2, sT3, sK1, sU1CS, sU1B, sU0B, sU2B, sU3B = ["s%d" % i for i in range(68, 83)]
sKS0, sKS1, sKS2, sKS3, sFL0, sFL1, sFL2, sFL3, sMI, sONE, sHH, sRC, sR2, sCG, sSPIN, sFLL = ["s%d" % i for i in range(83, 99)]
sX, sY = "s26", "s27"
sM0, sM1, sM2 = "s[8:9]", "s[12:13]", "s[14:15]"
vLANE = "v1"
vXD = [2, 3, 4, 5]
vXR = [[6, 7, 8, 9], [10, 11, 12, 13]]
vW1 = [14, 15, 16, 17]
vWQ = [18, 19, 20, 21]
vU1 = [22, 23, 24, 25]
vKD = [18, 19, 20, 21, 22]
vTA = [[26, 27], [28, 29]]
vAUG, vST, vFL, vC, vRSTD, vF = 30, 31, 32, 33, 34, 35
vBAUG = 36
RING = [40, 44, 48, 52]
vNON, vPA, vW2A, vW2B = 56, 57, 58, 59
ACC = [60, 76, 92]
TMP = 108
KA, PK = 128, 208
vKT = [[60, 61, 62, 63, 64], [65, 66, 67, 68, 69]]
vKAUG = [70, 71, 72, 73, 74]
aWPH = 160

HEADS = [[0, 2], [1, 3]]


def piece_tables():
    k = lambda h, s: 5 * h + s
    v = lambda h, s: 20 + 5 * h + s
    def pick(lst, residues):
        out = []
        for r in residues:
            c = [p for p in lst if p % 8 == r][0]
            lst.remove(c)
            out.append(c)
        return out
    k0 = [k(0, s) for s in range(5)]; k1 = [k(1, s) for s in range(5)]
    k2 = [k(2, s) for s in range(5)]; k3 = [k(3, s) for s in range(5)]
    va = [v(0, s) for s in range(5)] + [v(2, s) for s in range(5)]
    vb = [v(1, s) for s in range(5)] + [v(3, s) for s in range(5)]
    h0 = pick(k0, [1, 2, 3, 4]) + pick(k0, [0]) + pick(k2, [4, 5, 6]) + pick(k2, [2, 3]) + pick(va, [6, 7]) + pick(va, [0, 1, 2, 4]) + pick(va, [5, 0, 6, 7])
    h1 = pick(k1, [5, 6, 7, 0]) + pick(k1, [1]) + pick(k3, [7, 2, 3]) + pick(k3, [0, 1]) + pick(vb, [4, 5]) + pick(vb, [3, 5, 6, 7]) + pick(vb, [1, 2, 3, 4])
    for t in range(5):
        assert len({p % 8 for p in h0[4 * t:4 * t + 4] + h1[4 * t:4 * t + 4]}) == 8
    return [h0, h1]


P = piece_tables()

slow_paths = []
_uid = [0]


def uid():
    _uid[0] += 1
    return _uid[0]


def vr(a, n=1):
    return f"v{a}" if n == 1 else f"v[{a}:{a + n - 1}]"


def ar(a, n=1):
    return f"a{a}" if n == 1 else f"a[{a}:{a + n - 1}]"


nstamp = [0]


def stamp(name):
    if not OPT["stamps"]:
        return []
    name = str(name)
    if name == "start":
        i = 0
    elif name == "end":
        i = 13
    elif name in MARKS:
        i = 1 + MARKS.index(name)
        assert i < 13
    else:
        return []
    r = [I(f"s_memrealtime s[100:101]"), I("s_waitcnt lgkmcnt(0)"), I(f"v_accvgpr_write_b32 a{240 + i}, s100")]
    if i in (0, 13):
        r += [I(f"s_memtime s[100:101]"), I("s_waitcnt lgkmcnt(0)"), I(f"v_accvgpr_write_b32 a{254 + (i == 13)}, s100")]
    return r


def lit(s, val):
    return I(f"s_mov_b32 {s}, 0x{val & 0xffffffff:x}")


def poll_issue(addr=vPA, dst=vF):
    return [I(f"buffer_load_dword {vr(dst)}, {vr(addr)}, {SWS}, 0 offen sc1")]


def poll_check(addr=vPA, dst=vF):
    n = uid()
    slow_paths.append(f"""Lslow{n}:
    s_mov_b32 {sSPIN}, 0
Lspin{n}:
    s_add_u32 {sSPIN}, {sSPIN}, 1
    s_cmp_gt_u32 {sSPIN}, {OPT['spin']}
    s_cbranch_scc1 Lout{n}
    buffer_load_dword {vr(dst)}, {vr(addr)}, {SWS}, 0 offen sc1
    s_waitcnt vmcnt(0)
    v_cmp_ne_u32 vcc, {sNON}, {vr(dst)}
    s_nop 4
    s_cbranch_vccnz Lspin{n}
Lout{n}:
    s_nop 7
    s_branch Lback{n}""")
    return [I(f"v_cmp_ne_u32 vcc, {sNON}, {vr(dst)}")], [I(f"s_cbranch_vccnz Lslow{n}"), Label(f"Lback{n}")]


def publish(soff, non=vNON, fl=vFL):
    return [I(f"buffer_store_dword {vr(non)}, {vr(fl)}, {SWS}, {soff} offen sc1")]


def dma4(srd, voffs, soff, ldsbase):
    out = [I(f"s_add_u32 m0, {sLQ}, 0x{ldsbase:x}")]
    for n in range(4):
        out.append(I(f"buffer_load_dwordx4 {vr(voffs[n])}, {srd}, {soff} offen" + (f" offset:{n * 1024}" if n else "") + " lds"))
    return out


def vmops(lst):
    return [i for i in lst if i.kind == "vm"]


def entry():
    s = L(f"""
    s_cmp_ge_u32 s2, 256
    s_cbranch_scc1 Lend
    s_load_dwordx16 s[4:19], s[0:1], 0
    s_load_dwordx4 s[20:23], s[0:1], 64
    s_load_dwordx2 s[24:25], s[0:1], 80
    v_lshrrev_b32 v2, 6, v0
    v_and_b32 {vLANE}, 63, v0
    v_readfirstlane_b32 {sWV}, v2
    s_and_b32 {sX}, s2, 7
    s_lshr_b32 {sY}, s2, 3
    s_and_b32 {sT0}, {sX}, 1
    s_lshl_b32 {sT0}, {sT0}, 3
    s_and_b32 {sT1}, {sY}, 7
    s_add_u32 {sRB}, {sT0}, {sT1}
    s_and_b32 {sT0}, {sX}, 6
    s_bfe_u32 {sT1}, {sY}, 0x10003
    s_add_u32 {sG}, {sT0}, {sT1}
    s_lshl_b32 {sLQ}, {sWV}, 12
    s_mov_b32 {sONE}, 0x3f803f80
    s_lshl_b32 {sT0}, {sX}, 2
    s_and_b32 {sT1}, {sY}, 3
    s_add_u32 {sHH}, {sT0}, {sT1}
    s_lshr_b32 {sRC}, {sY}, 2
    s_and_b32 {sT0}, {sX}, 6
    s_lshl_b32 {sT0}, {sT0}, 2
    s_and_b32 {sT1}, {sY}, 7
    s_add_u32 {sR2}, {sT0}, {sT1}
    s_and_b32 {sT0}, {sX}, 1
    s_lshl_b32 {sT0}, {sT0}, 2
    s_lshr_b32 {sT1}, {sY}, 3
    s_add_u32 {sCG}, {sT0}, {sT1}
    """)
    if OPT["stamps"]:
        s += [I(f"v_accvgpr_write_b32 a{240 + i}, 0") for i in range(16)] + stamp("start")
    s += [I("s_waitcnt lgkmcnt(0)")] + stamp("k")
    def srd(name, lo, size):
        b = int(name[2:name.index(":")])
        return L(f"""
        s_mov_b32 s{b}, s{lo}
        s_and_b32 s{b + 1}, s{lo + 1}, 0xffff
        s_mov_b32 s{b + 2}, 0x{size:x}
        s_mov_b32 s{b + 3}, 0x20000""")
    s += srd(SWS, 24, WS_SIZE) + srd(SX, 4, 2621440)
    s += L(f"""
    v_mov_b32 v128, 0
    v_lshrrev_b32 v129, 5, v0
    s_lshl_b32 {sT0}, s2, 3
    v_add_u32 v129, {sT0}, v129
    v_mul_u32_u24 v130, 1280, v129
    v_and_b32 v131, 31, v0
    v_lshl_add_u32 v130, v131, 4, v130
    buffer_load_dword v128, v128, {SWS}, 0 offen sc1
    v_cmp_gt_u32 vcc, 16, v131
    v_mov_b32 v132, 0x{OOB:x}
    buffer_load_dwordx4 v[136:139], v130, {SX}, 0 offen
    buffer_load_dwordx4 v[140:143], v130, {SX}, 0 offen offset:512
    v_cndmask_b32 v132, v132, v130, vcc
    buffer_load_dwordx4 v[144:147], v132, {SX}, 0 offen offset:1024
    """)
    s += srd(SWQ, 6, 2457600) + srd(SW1, 14, 2211840)
    b = int(SR[2:SR.index(":")])
    s += L(f"""
    s_lshr_b32 {sT0}, s2, 2
    s_cmp_lt_u32 {sT0}, 30
    s_cselect_b32 s{b}, s6, s14
    s_cselect_b32 s{b + 1}, s7, s15
    s_cselect_b32 s{b + 2}, 2457600, 2211840
    s_cselect_b32 {sT1}, 3840, 3456
    s_cselect_b32 {sT2}, 0, 30
    s_and_b32 s{b + 1}, s{b + 1}, 0xffff
    s_mov_b32 s{b + 3}, 0x20000
    s_sub_u32 {sT2}, {sT0}, {sT2}
    s_lshl_b32 {sT2}, {sT2}, 7
    s_cmp_lt_u32 s2, 228
    s_cselect_b32 s{b + 2}, s{b + 2}, 0
    s_and_b32 {sT3}, s2, 3
    s_mul_i32 {sT3}, {sT3}, 160
    s_mul_i32 {sK1}, {sWV}, 40
    s_add_u32 {sT3}, {sT3}, {sK1}
    v_lshrrev_b32 v133, 3, {vLANE}
    v_bfe_u32 v134, {vLANE}, 4, 1
    v_lshlrev_b32 v134, 2, v134
    v_and_b32 v135, 7, {vLANE}
    v_xor_b32 v134, v134, v135
    v_lshlrev_b32 v134, 4, v134
    v_add_u32 v135, {sT3}, v133
    v_mul_lo_u32 v135, v135, {sT1}
    v_add_u32 v135, v135, v134
    s_lshl_b32 {sT1}, {sT1}, 3
    s_mul_i32 {sT3}, {sWV}, 5120
    s_cmp_lt_u32 {sY}, 16
    s_cselect_b32 {sK1}, 0x{L_CB_KV:x}, 0x{L_CB_M:x}
    s_add_u32 {sT3}, {sT3}, {sK1}
    s_mov_b32 {sMI}, {sK1}
    """)
    cdma = []
    for n in range(5):
        s.append(I(f"s_add_u32 m0, {sT3}, {n * 1024}"))
        if n:
            s.append(I(f"s_add_u32 {sT2}, {sT2}, {sT1}"))
        d = I(f"buffer_load_dwordx4 v135, {SR}, {sT2} offen lds")
        cdma.append(d)
        s.append(d)
    s += L(f"""
    s_lshl_b32 {sT0}, {sRB}, 7
    s_lshl_b32 {sT1}, {sWV}, 5
    s_add_u32 {sT0}, {sT0}, {sT1}
    v_add_u32 v148, {sT0}, v133
    v_mul_u32_u24 v148, 1280, v148
    v_lshrrev_b32 v149, 4, {vLANE}
    v_and_b32 v150, 7, {vLANE}
    v_xor_b32 v149, v149, v150
    v_xor_b32 v150, 4, v149
    v_lshl_add_u32 {vr(vXD[0])}, v149, 4, v148
    v_lshl_add_u32 {vr(vXD[1])}, v150, 4, v148
    v_add_u32 {vr(vXD[2])}, {2 * (8 * 1280 - 1024)}, {vr(vXD[0])}
    v_add_u32 {vr(vXD[3])}, {3 * (8 * 1280 - 1024)}, {vr(vXD[1])}
    v_add_u32 {vr(vXD[1])}, {1 * (8 * 1280 - 1024)}, {vr(vXD[1])}
    """)
    s += stamp("e1")
    return s, cdma


def xs_load(stage, ldsbase):
    return [lit(sT0, stage * 128)] + dma4(SX, vXD, sT0, ldsbase)


def w_offsets(dst, stride):
    s = L(f"""
    s_lshl_b32 {sT0}, {sWV}, 5
    v_add_u32 v151, {sT0}, v133""")
    if isinstance(stride, int):
        s += L(f"""
        v_mul_u32_u24 v151, {stride}, v151
        v_add_u32 {vr(dst[0])}, v151, v134""")
        for n in range(1, 4):
            s.append(I(f"v_add_u32 {vr(dst[n])}, {n * (8 * stride - 1024)}, {vr(dst[0])}"))
    else:
        s += L(f"""
        v_mul_lo_u32 v151, v151, {stride}
        s_lshl_b32 {sT0}, {stride}, 3
        s_sub_u32 {sT0}, {sT0}, 1024
        v_add_u32 {vr(dst[0])}, v151, v134""")
        for n in range(1, 4):
            s.append(I(f"v_add_u32 {vr(dst[n])}, {sT0}, {vr(dst[n - 1])}"))
    return s


def common_setup():
    def srd(name, lo, size):
        b = int(name[2:name.index(":")])
        return L(f"""
        s_mov_b32 s{b}, s{lo}
        s_and_b32 s{b + 1}, s{lo + 1}, 0xffff
        s_mov_b32 s{b + 2}, 0x{size:x}
        s_mov_b32 s{b + 3}, 0x20000""")
    s = srd(SOUT, 20, 2621440) + srd(SB1, 16, 3456) + srd(SPH, 8, 25600)
    s += w_offsets(vW1, 3456)
    s += L(f"""
    v_and_b32 v148, 31, {vLANE}
    v_bfe_u32 v149, {vLANE}, 1, 3
    v_lshrrev_b32 v150, 5, {vLANE}
    v_xor_b32 v149, v149, v150
    v_lshlrev_b32 v151, 7, v148
    v_add_u32 v151, {sLQ}, v151
    """)
    for k in range(4):
        s += L(f"""
        v_xor_b32 v152, {2 * k}, v149
        v_lshl_add_u32 {vr(vXR[0][k])}, v152, 4, v151
        v_add_u32 {vr(vXR[1][k])}, 0x10000, {vr(vXR[0][k])}""")
    s += L(f"""
    v_bfe_u32 v152, {vLANE}, 4, 1
    v_bfe_u32 v153, {vLANE}, 1, 1
    v_lshl_add_u32 v152, v152, 1, v153       ; q = 2gi + (c>>1)
    v_and_b32 v153, 1, {vLANE}               ; h'
    v_lshrrev_b32 v154, 1, v152              ; q>>1
    v_lshl_add_u32 v154, v153, 1, v154       ; col4>>1 = 2h' + (q>>1)
    v_bfe_u32 v155, {vLANE}, 3, 1            ; (r>>1)&1
    v_lshlrev_b32 v155, 2, v155
    v_xor_b32 v154, v154, v155
    v_and_b32 v152, 1, v152                  ; col4&1 = q&1
    v_lshlrev_b32 v152, 3, v152
    v_bfe_u32 v155, {vLANE}, 2, 2            ; r
    v_lshl_add_u32 v155, v150, 3, v155       ; k = 8hk + r
    v_lshl_add_u32 v152, v155, 7, v152
    v_lshl_add_u32 {vr(vTA[0][0])}, v154, 4, v152
    v_xor_b32 {vr(vTA[1][0])}, 64, {vr(vTA[0][0])}
    v_add_u32 {vr(vTA[0][1])}, 0x10000, {vr(vTA[0][0])}
    v_add_u32 {vr(vTA[1][1])}, 0x10000, {vr(vTA[1][0])}
    """)
    s += L(f"""
    v_bfe_u32 v152, {vLANE}, 2, 1
    v_bfe_u32 v153, {vLANE}, 3, 2
    v_and_b32 v154, 3, {vLANE}
    v_lshl_add_u32 v154, v153, 2, v154
    v_lshl_add_u32 v154, v152, 4, v154
    v_lshlrev_b32 v154, 4, v154
    v_add_u32 {vr(vAUG)}, 0x{L_AUG:x}, v154
    """)
    s += L(f"""
    s_lshl_b32 {sT0}, {sRB}, 3
    s_lshl_b32 {sT1}, {sWV}, 1
    s_add_u32 {sT0}, {sT0}, {sT1}
    v_bfe_u32 v152, {vLANE}, 4, 1
    v_add_u32 v152, {sT0}, v152
    s_mov_b32 {sT0}, {RT}
    v_mul_lo_u32 v152, v152, {sT0}
    v_and_b32 v153, 15, {vLANE}
    v_lshlrev_b32 v153, 4, v153
    v_lshl_add_u32 v153, v150, 9, v153
    v_add_u32 v152, v152, v153
    v_add_u32 {vr(vST)}, 0x{WS_ACT:x}, v152
    v_cmp_eq_u32 vcc, 0, v0
    v_mov_b32 v152, 0x{OOB:x}
    v_cndmask_b32 {vr(vFL)}, v152, 0, vcc
    """)
    s += L(f"""
    s_mul_i32 {sT0}, {sCG}, {76 * 5120}
    s_mul_i32 {sT1}, {sWV}, 5120
    s_add_u32 {sT0}, {sT0}, {sT1}
    s_add_u32 {sT0}, {sT0}, 0x{WS_W2F:x}
    v_lshlrev_b32 v152, 4, {vLANE}
    v_add_u32 {vr(vW2A)}, {sT0}, v152
    v_add_u32 {vr(vW2B)}, 4096, {vr(vW2A)}
    """)
    return s


def small_dmas():
    s = L(f"""
    s_mul_i32 {sT0}, {sHH}, 800
    v_subrev_u32 v152, 10, {vLANE}
    v_cmp_gt_u32 vcc, 50, v152
    v_lshlrev_b32 v152, 4, v152
    v_mov_b32 v153, 0x{OOB:x}
    s_mov_b32 m0, 0x{L_OW:x}
    v_cndmask_b32 v152, v153, v152, vcc
    buffer_load_dwordx4 v152, {SPH}, {sT0} offen lds
    s_mov_b32 m0, 0x{L_ZERO:x}
    s_nop 0
    buffer_load_dwordx4 v153, {SPH}, 0 offen lds
    """)
    return s


def stats_compute():
    s = L(f"""
    v_mov_b32 v156, 0
    v_mov_b32 v157, 0
    """)
    for i in range(12):
        s.append(I(f"v_dot2_f32_bf16 v156, v{136 + i}, {sONE}, v156"))
        s.append(I(f"v_dot2_f32_bf16 v157, v{136 + i}, v{136 + i}, v157"))
    s += L(f"""
    v_readfirstlane_b32 {sNON}, v128
    s_add_u32 {sNON}, {sNON}, 0x9e3779b1
    v_mov_b32 {vr(vNON)}, {sNON}
    """)
    for m in ("quad_perm:[1,0,3,2]", "quad_perm:[2,3,0,1]", "row_half_mirror", "row_mirror"):
        s.append(I(f"v_add_f32_dpp v156, v156, v156 {m} row_mask:0xf bank_mask:0xf"))
        s.append(I(f"v_add_f32_dpp v157, v157, v157 {m} row_mask:0xf bank_mask:0xf"))
    s += L(f"""
    v_mov_b32 v158, v156
    v_mov_b32 v159, v157
    v_permlane16_swap_b32 v156, v158
    v_permlane16_swap_b32 v157, v159
    v_add_f32 v156, v156, v158
    v_add_f32 v157, v157, v159
    v_mul_f32 v156, 0xbacccccd, v156         ; -mean
    v_mul_f32 v157, 0x3acccccd, v157         ; E[x^2]
    v_fma_f32 v157, -v156, v156, v157
    v_max_f32 v157, 0, v157
    v_add_f32 v157, 0x3727c5ac, v157         ; + 1e-5
    v_rsq_f32 v141, v157
    v_cvt_pk_bf16_f32 v136, v156, v156
    v_mul_f32 v157, v157, v141               ; std
    v_lshlrev_b32 v158, 16, v136
    v_sub_f32 v158, v156, v158
    v_cvt_pk_bf16_f32 v137, v158, v157
    v_and_b32 v159, 0xffff0000, v137
    v_sub_f32 v159, v157, v159
    v_cvt_pk_bf16_f32 v138, v159, 0
    v_mov_b32 v139, 0
    v_mul_f32 v140, 0x{LOG2E:x}, v141
    v_mov_b32 v142, 0
    v_mov_b32 v143, 0
    v_cmp_eq_u32 vcc, 0, v131
    v_lshlrev_b32 v129, 5, v129
    v_add_u32 v129, 0x{WS_STATS:x}, v129
    v_mov_b32 v158, 0x{OOB:x}
    v_cndmask_b32 v129, v158, v129, vcc
    buffer_store_dwordx4 v[136:139], v129, {SWS}, 0 offen sc1
    buffer_store_dwordx4 v[140:143], v129, {SWS}, 0 offen offset:16 sc1
    """)
    return s


def colsum_compute(cdma):
    s = [WaitVM(cdma), I("s_barrier")]
    s += L(f"""
    s_and_b32 {sT0}, {sWV}, 1
    s_lshr_b32 {sT1}, {sWV}, 1
    s_mul_i32 {sT2}, {sT1}, {80 * 128}
    s_add_u32 {sT2}, {sT2}, {sMI}
    s_lshl_b32 {sT3}, {sT0}, 2
    v_bfe_u32 v160, {vLANE}, 4, 1
    v_bfe_u32 v161, {vLANE}, 1, 1
    v_lshl_add_u32 v160, v160, 1, v161
    v_bfe_u32 v161, {vLANE}, 3, 1
    v_lshlrev_b32 v161, 2, v161
    v_xor_b32 v160, v160, v161
    v_xor_b32 v160, {sT3}, v160
    v_and_b32 v161, 1, {vLANE}
    v_lshlrev_b32 v161, 3, v161
    v_lshl_add_u32 v160, v160, 4, v161
    v_bfe_u32 v161, {vLANE}, 2, 2
    v_lshrrev_b32 v162, 5, {vLANE}
    v_lshl_add_u32 v161, v162, 3, v161
    v_lshl_add_u32 v160, v161, 7, v160
    v_add_u32 v160, {sT2}, v160
    """)
    for st in range(5):
        for e in range(2):
            s.append(I(f"ds_read_b64_tr_b16 v[{164 + 4 * st + 2 * e}:{165 + 4 * st + 2 * e}], v160 offset:{st * 2048 + e * 512}"))
    s += L(f"""
    v_mov_b32 v184, {sONE}
    v_mov_b32 v185, {sONE}
    v_mov_b32 v186, {sONE}
    v_mov_b32 v187, {sONE}
    s_and_b32 {sT2}, s2, 3
    s_lshl_b32 {sT2}, {sT2}, 1
    s_add_u32 {sT2}, {sT2}, {sT1}
    s_lshl_b32 {sT2}, {sT2}, 14
    s_lshr_b32 {sT3}, s2, 2
    s_lshl_b32 {sT3}, {sT3}, 8
    s_add_u32 {sT2}, {sT2}, {sT3}
    s_lshl_b32 {sT0}, {sT0}, 7
    s_add_u32 {sT2}, {sT2}, {sT0}
    s_add_u32 {sT2}, {sT2}, 0x{WS_COLS:x}
    s_cmp_lt_u32 s2, 228
    s_cselect_b32 {sT3}, 32, 0
    v_cmp_gt_u32 vcc, {sT3}, {vLANE}
    v_lshlrev_b32 v161, 2, {vLANE}
    v_mov_b32 v162, 0x{OOB:x}
    v_cndmask_b32 v161, v162, v161, vcc
    """)
    for st in range(5):
        c = "0" if st == 0 else "v[188:203]"
        s.append(I(f"v_mfma_f32_32x32x16_bf16 v[188:203], v[184:187], v[{164 + 4 * st}:{167 + 4 * st}], {c}"))
    s.append(I(f"buffer_store_dword v188, v161, {SWS}, {sT2} offen sc1"))
    return s


def prep_poll_addr(role):
    if role == "M":
        s = L(f"""
        s_cmp_eq_u32 {sWV}, 1
        s_cselect_b32 {sT0}, {sU1B}, {sU0B}
        s_cselect_b32 {sT1}, {sKS1}, {sKS0}
        s_cmp_eq_u32 {sWV}, 2
        s_cselect_b32 {sT1}, {sKS2}, {sT1}
        s_cmp_eq_u32 {sWV}, 3
        s_cselect_b32 {sT1}, {sKS3}, {sT1}
        s_lshr_b32 {sT1}, {sT1}, 11
        s_sub_u32 {sT2}, {sT1}, 38
        s_add_u32 {sT3}, {sT1}, 30
        s_cmp_ge_u32 {sT1}, 38
        s_cselect_b32 {sT0}, {sT2}, {sT3}
        v_mov_b32 v{TMP}, {sT0}
        v_lshlrev_b32 v{TMP + 2}, 6, v{TMP}
        v_add_u32 v{TMP + 2}, v{TMP + 2}, {vLANE}
        """)
    else:
        s = L(f"""
        s_mul_i32 {sT0}, {sG}, 80
        s_lshr_b32 {sT1}, {sT0}, 6
        s_add_u32 {sT1}, {sT1}, 10
        s_add_u32 {sT2}, {sG}, 49
        v_subrev_u32 v{TMP}, 4, {vLANE}
        v_bfe_u32 v{TMP + 1}, v{TMP}, 2, 1
        v_bfe_u32 v{TMP + 2}, v{TMP}, 3, 1
        v_mul_u32_u24 v{TMP + 2}, 10, v{TMP + 2}
        v_add3_u32 v{TMP + 1}, v{TMP + 1}, v{TMP + 2}, {sT1}
        v_cmp_gt_u32 vcc, 16, v{TMP}
        v_mov_b32 v{TMP + 2}, {sT2}
        v_cndmask_b32 v{TMP}, v{TMP + 2}, v{TMP + 1}, vcc
        s_add_u32 {sT0}, {sT0}, 640
        v_min_u32 v{TMP + 1}, 159, v0
        v_cmp_le_u32 vcc, 80, v{TMP + 1}
        v_add_u32 v{TMP + 1}, {sT0}, v{TMP + 1}
        v_add_u32 v{TMP + 3}, 560, v{TMP + 1}
        v_cndmask_b32 v{TMP + 1}, v{TMP + 1}, v{TMP + 3}, vcc
        s_lshl_b32 {sT2}, {sT2}, 6
        v_add_u32 v{TMP + 3}, {sT2}, {vLANE}
        v_cmp_le_u32 vcc, 192, v0
        s_nop 1
        v_cndmask_b32 v{TMP + 2}, v{TMP + 1}, v{TMP + 3}, vcc
        """)
    s += L(f"""
    v_and_b32 v{TMP + 1}, 3, {vLANE}
    v_lshl_add_u32 v{TMP}, v{TMP}, 2, v{TMP + 1}
    s_lshl_b32 {sT0}, {sRB}, 4
    s_lshl_b32 {sT1}, {sWV}, 2
    s_add_u32 {sT0}, {sT0}, {sT1}
    v_add_u32 v{TMP + 1}, {sT0}, v{TMP + 1}
    v_cmp_gt_u32 vcc, 4, {vLANE}
    s_nop 1
    v_cndmask_b32 v{TMP}, v{TMP}, v{TMP + 1}, vcc
    v_lshlrev_b32 v{TMP}, 7, v{TMP}
    v_add_u32 {vr(vPA)}, 0x{WS_FLAGS + F_PREP * 128:x}, v{TMP}
    """)
    return s


def aug_loads():
    T = TMP
    s = L(f"""
    v_lshlrev_b32 v{T}, 2, v{T + 2}
    v_subrev_u32 v{T + 1}, 1920, v{T + 2}
    v_cmp_le_u32 vcc, 1920, v{T + 2}
    v_lshlrev_b32 v{T + 1}, 1, v{T + 1}
    v_mov_b32 v{T + 3}, 0x{OOB:x}
    v_cndmask_b32 v{T + 1}, v{T + 3}, v{T + 1}, vcc
    """)
    for p in range(8):
        s.append(lit(sT0, WS_COLS + p * 16384))
        s.append(I(f"buffer_load_dword v{T + 4 + p}, v{T}, {SWS}, {sT0} offen sc1"))
    s += L(f"""
    buffer_load_ushort v{T + 12}, v{T + 1}, {SB1}, 0 offen
    s_lshl_b32 {sT0}, {sRB}, 7
    s_lshl_b32 {sT1}, {sWV}, 5
    s_add_u32 {sT0}, {sT0}, {sT1}
    s_lshl_b32 {sT0}, {sT0}, 5
    s_add_u32 {sT0}, {sT0}, 0x{WS_STATS:x}
    v_and_b32 v{T}, 31, {vLANE}
    v_lshlrev_b32 v{T}, 5, v{T}
    v_cmp_gt_u32 vcc, 32, {vLANE}
    buffer_load_dwordx2 v[{T + 14}:{T + 15}], v{T}, {SWS}, {sT0} offen offset:16 sc1
    v_cndmask_b32 v{T + 1}, v{T + 3}, v{T}, vcc
    buffer_load_dwordx4 {vr(vBAUG, 4)}, v{T + 1}, {SWS}, {sT0} offen sc1
    """)
    return s


def aug_build():
    T = TMP
    s = L(f"""
    v_add_f32 v{T + 4}, v{T + 4}, v{T + 5}
    v_add_f32 v{T + 6}, v{T + 6}, v{T + 7}
    v_add_f32 v{T + 8}, v{T + 8}, v{T + 9}
    v_add_f32 v{T + 10}, v{T + 10}, v{T + 11}
    v_add_f32 v{T + 4}, v{T + 4}, v{T + 6}
    v_add_f32 v{T + 8}, v{T + 8}, v{T + 10}
    v_lshlrev_b32 v{T}, 4, v0
    v_add_f32 v{T + 4}, v{T + 4}, v{T + 8}
    v_add_u32 v{T}, 0x{L_AUG:x}, v{T}
    v_cvt_pk_bf16_f32 v{T + 5}, v{T + 4}, v{T + 4}
    v_mov_b32 v{T + 11}, 0
    v_lshlrev_b32 v{T + 6}, 16, v{T + 5}
    v_and_b32 v{T + 5}, 0xffff, v{T + 5}
    v_sub_f32 v{T + 6}, v{T + 4}, v{T + 6}
    v_lshl_or_b32 v{T + 9}, v{T + 12}, 16, v{T + 5}
    v_cvt_pk_bf16_f32 v{T + 8}, v{T + 4}, v{T + 6}
    v_mov_b32 v{T + 10}, v{T + 12}
    v_mov_b32 {vr(vC)}, v{T + 14}
    v_mov_b32 {vr(vRSTD)}, v{T + 15}
    ds_write_b128 v{T}, v[{T + 8}:{T + 11}]
    """)
    return s


def epi_act(acc, K, soff, tile, T=TMP):
    U, A, O = T, T + 4, T + 8
    s = []
    for b in range(4):
        e = [acc + 4 * b + i for i in range(4)]
        s += [I(f"v_mul_f32 v{r}, v{r}, {vr(vC)}") for r in e]
        s += [I(f"v_exp_f32 v{U + i}, v{e[i]}") for i in range(4)]
        s += [I(f"v_fma_f32 v{A + i}, v{U + i}, -0.5, -1.0") for i in range(4)]
        s += [I(f"v_fma_f32 v{A + i}, v{U + i}, v{A + i}, {K}") for i in range(4)]
        s += [I(f"v_rcp_f32 v{A + i}, v{A + i}") for i in range(4)]
        s += [I(f"v_fma_f32 v{e[i]}, v{e[i]}, v{A + i}, v{e[i]}") for i in range(4)]
        s += [I(f"v_cvt_pk_bf16_f32 v{O + 2 * b}, v{e[0]}, v{e[1]}"), I(f"v_cvt_pk_bf16_f32 v{O + 2 * b + 1}, v{e[2]}, v{e[3]}")]
        if b & 1:
            o = O + 4 * (b >> 1)
            s.append(I(f"buffer_store_dwordx4 v[{o}:{o + 3}], {vr(vST)}, {SWS}, {soff} offen offset:{tile * 1024 + (b >> 1) * 256} sc1"))
    return s


def epi_q(acc, soff, tile, T=TMP):
    O = T + 8
    s = []
    for b in range(2):
        e = [acc + 8 * b + i for i in range(8)]
        s += [I(f"v_mul_f32 v{r}, v{r}, {vr(vC)}") for r in e]
        s += [I(f"v_cvt_pk_bf16_f32 v{O + 4 * b + i}, v{e[2 * i]}, v{e[2 * i + 1]}") for i in range(4)]
        s.append(I(f"buffer_store_dwordx4 v[{O + 4 * b}:{O + 4 * b + 3}], {vr(vST)}, {SWS}, {soff} offen offset:{tile * 1024 + b * 256} sc1"))
    return s


class Stream:
    PD = 3

    def __init__(self, pos=0):
        self.fr = []
        self.ev = {}
        self.pos0 = pos

    def add(self, reads, mfma):
        self.fr.append((reads, mfma))
        return len(self.fr) - 1

    def event(self, j, insts, name=None):
        if name:
            k = [i for i, x in enumerate(insts) if x.op == "s_barrier"][0] + 1
            insts = stamp(name + "a") + insts[:k] + stamp(name + "b") + insts[k:]
        self.ev.setdefault(j, []).extend(insts)

    def reads(self, j):
        if j >= len(self.fr):
            return self.ev.get(j, [])
        return self.ev.get(j, []) + self.fr[j][0](RING[(j + self.pos0) % 4])

    def build(self):
        pro = []
        for j in range(min(self.PD, len(self.fr))):
            pro += self.reads(j)
        groups = []
        for i in range(len(self.fr)):
            groups.append([self.fr[i][1](RING[(i + self.pos0) % 4])] + self.reads(i + self.PD))
        return pro, groups


def tr_unit(tile, slot, step):
    base = vTA[tile][slot >> 2]
    off = (slot & 3) * 16384 + step * 2048
    return lambda d: [I(f"ds_read_b64_tr_b16 v[{d}:{d + 1}], {vr(base)} offset:{off}"),
                      I(f"ds_read_b64_tr_b16 v[{d + 2}:{d + 3}], {vr(base)} offset:{off + 512}")]


def mm(acc, kstep, first):
    return lambda a: I(f"v_mfma_f32_32x32x16_bf16 {vr(acc, 16)}, {vr(a, 4)}, {ar(4 * kstep, 4)}, " + ("0" if first else vr(acc, 16)))


def aug_frag(base, off, acc):
    return (lambda d: [I(f"ds_read_b128 {vr(d, 4)}, {vr(base)} offset:{off}")],
            lambda a: I(f"v_mfma_f32_32x32x16_bf16 {vr(acc, 16)}, {vr(a, 4)}, {vr(vBAUG, 4)}, {vr(acc, 16)}"))


def x_reads(stage, slot):
    return [I(f"ds_read_b128 {ar(16 * stage + 4 * k, 4)}, {vr(vXR[slot >> 2][k])} offset:{(slot & 3) * 16384}") for k in range(4)]


W2REG = {}
for n in range(4):
    W2REG[n] = ("a", 160 + 20 * n)
for n in range(4, 10):
    W2REG[n] = ("v", 128 + 20 * (n - 4))
for n in range(10, 14):
    W2REG[n] = ("a", 80 + 20 * (n - 10))
for n in range(14, 18):
    W2REG[n] = ("a", 160 + 20 * (n - 14))
W2REG[18] = ("v", 128)


def w2_loads(n, st=sT3, vW2A=vW2A, vW2B=vW2B):
    f, b = W2REG[n]
    s = [lit(st, n * 20480)]
    for ct in range(5):
        r = f"{f}[{b + 4 * ct}:{b + 4 * ct + 3}]"
        if ct < 4:
            s.append(I(f"buffer_load_dwordx4 {r}, {vr(vW2A)}, {SWS}, {st} offen offset:{ct * 1024} sc1"))
        else:
            s.append(I(f"buffer_load_dwordx4 {r}, {vr(vW2B)}, {SWS}, {st} offen sc1"))
    return s


def w2_poll():
    T = TMP + 16
    a = L(f"""
    v_lshlrev_b32 {vr(vPA)}, 7, {vLANE}
    v_add_u32 {vr(vPA)}, 0x{WS_FLAGS + F_W2 * 128:x}, {vr(vPA)}
    v_add_u32 v{T}, {64 * 128}, {vr(vPA)}
    """) + poll_issue() + poll_issue(T, T + 1)
    c1, b1 = poll_check()
    c2, b2 = poll_check(T, T + 1)
    return a, c1 + b1 + c2 + b2


def repack_setup(rnd):
    b = int(SR[2:SR.index(":")])
    V = TMP + 16
    s = L(f"""
    s_lshl_b32 {sT0}, {sMI}, 2
    s_add_u32 {sT0}, {sT0}, {sWV}
    s_add_u32 {sT0}, {sT0}, {512 * rnd}
    s_mul_i32 {sT1}, {sT0}, 6554
    s_lshr_b32 {sT1}, {sT1}, 16              ; ks74
    s_mul_i32 {sT2}, {sT1}, 10
    s_sub_u32 {sT2}, {sT0}, {sT2}            ; cu
    s_cmp_lt_u32 {sT1}, 54
    s_cselect_b32 s{b}, s18, s10
    s_cselect_b32 s{b + 1}, s19, s11
    s_cselect_b32 s{b + 2}, 2211840, 819200
    s_cselect_b32 s3, 0, 2
    s_and_b32 s{b + 1}, s{b + 1}, 0xffff
    s_cmp_lt_u32 {sT0}, 740
    s_cselect_b32 s{b + 2}, s{b + 2}, 0
    s_cselect_b32 s99, 0, 0x{OOB:x}
    s_add_u32 s3, s3, {sT1}                  ; slot
    s_mul_i32 s3, s3, 5120
    s_add_u32 s3, s3, 0x{WS_W2F:x}
    """)
    for c in range(4):
        s += L(f"""
        s_lshl_b32 {sT0}, {sT2}, 2
        s_add_u32 {sT0}, {sT0}, {c}
        s_mul_i32 {sT3}, {sT0}, 205
        s_lshr_b32 {sT3}, {sT3}, 10
        s_mul_i32 s{20 + c}, {sT3}, {76 * 5120 - 5 * 1024}
        s_lshl_b32 {sT0}, {sT0}, 10
        s_add_u32 s{20 + c}, s{20 + c}, {sT0}
        s_add_u32 s{20 + c}, s{20 + c}, s3
        """)
    s += L(f"""
    v_lshrrev_b32 v{V}, 3, {vLANE}
    v_lshrrev_b32 v{V + 1}, 5, {vLANE}
    v_mul_u32_u24 v{V + 1}, 16, v{V + 1}
    s_cmp_ge_u32 {sT1}, 70
    s_cselect_b32 {sT0}, 1, 0
    v_mul_u32_u24 v{V + 1}, {sT0}, v{V + 1}
    v_add_u32 v{V}, v{V}, v{V + 1}           ; rem: (i&3) + 20e = i + 16e
    v_mul_u32_u24 v{V}, 1280, v{V}
    v_and_b32 v{V + 1}, 7, {vLANE}
    v_lshl_add_u32 v{V}, v{V + 1}, 4, v{V}
    s_lshl_b32 {sT0}, {sT1}, 5
    s_sub_u32 {sT3}, {sT1}, 54
    s_mul_i32 {sT3}, {sT3}, 40
    s_cmp_ge_u32 {sT1}, 54
    s_cselect_b32 {sT0}, {sT3}, {sT0}
    s_cselect_b32 s3, {20 * 1280}, {16 * 1280}
    s_sub_u32 {sT3}, {sT1}, 70
    s_mul_i32 {sT3}, {sT3}, 160
    s_add_u32 {sT3}, {sT3}, 16
    s_cmp_ge_u32 {sT1}, 70
    s_cselect_b32 {sT0}, {sT3}, {sT0}
    s_cselect_b32 s3, {80 * 1280}, s3
    s_cselect_b32 {sT1}, {40 * 1280}, {8 * 1280}
    s_mul_i32 {sT0}, {sT0}, 1280
    s_lshl_b32 {sT2}, {sT2}, 7
    s_add_u32 {sT0}, {sT0}, {sT2}
    s_add_u32 m0, {sLQ}, 0x{L_CB_M:x}
    s_add_u32 {sT2}, {sT0}, {sT1}
    buffer_load_dwordx4 v{V}, {SR}, {sT0} offen lds
    s_add_u32 m0, {sLQ}, 0x{L_CB_M + 1024:x}
    s_add_u32 {sT0}, {sT0}, s3
    buffer_load_dwordx4 v{V}, {SR}, {sT2} offen lds
    s_add_u32 m0, {sLQ}, 0x{L_CB_M + 2048:x}
    s_add_u32 {sT2}, {sT2}, s3
    buffer_load_dwordx4 v{V}, {SR}, {sT0} offen lds
    s_add_u32 m0, {sLQ}, 0x{L_CB_M + 3072:x}
    s_nop 0
    buffer_load_dwordx4 v{V}, {SR}, {sT2} offen lds
    """)
    return s


def repack_finish(dmas, R):
    V = TMP + 16
    s = L(f"""
    v_lshrrev_b32 v{V}, 4, {vLANE}
    v_bfe_u32 v{V + 1}, {vLANE}, 2, 2
    v_lshl_add_u32 v{V}, v{V}, 3, v{V + 1}
    v_and_b32 v{V + 1}, 3, {vLANE}
    v_lshlrev_b32 v{V + 1}, 3, v{V + 1}
    v_lshl_add_u32 v{V}, v{V}, 7, v{V + 1}
    v_add_u32 v{V}, {sLQ}, v{V}
    v_add_u32 v{V}, 0x{L_CB_M:x}, v{V}
    v_lshlrev_b32 v{V + 1}, 4, {vLANE}
    v_or_b32 v{V + 1}, s99, v{V + 1}
    """)
    s.append(WaitVM(dmas))
    rd = []
    for c in range(4):
        for e in range(2):
            rd.append(I(f"ds_read_b64_tr_b16 v[{R + 4 * c + 2 * e}:{R + 4 * c + 2 * e + 1}], v{V} offset:{c * 32 + e * 512}"))
    s += rd
    st = [I(f"buffer_store_dwordx4 v[{R + 4 * c}:{R + 4 * c + 3}], v{V + 1}, {SWS}, s{20 + c} offen sc1") for c in range(4)]
    s += st
    return s, rd, st


def role_M(out, st, cdma):
    s = [Label("LroleM")]
    bu1 = int(SU1[2:SU1.index(":")])
    bu3 = int(SU3[2:SU3.index(":")])
    s += L(f"""
    s_lshl_b32 {sU0B}, {sG}, 7
    s_lshl_b32 {sT0}, {sG}, 11
    s_add_u32 {sKS0}, {sT0}, {76 * 1024}
    s_cmp_lt_u32 {sG}, 2
    s_cselect_b32 s{bu1}, s6, s14
    s_cselect_b32 s{bu1 + 1}, s7, s15
    s_cselect_b32 s{bu1 + 2}, 2457600, 2211840
    s_cselect_b32 {sU1CS}, 3840, 3456
    s_cselect_b32 {sT1}, 8, -2
    s_cselect_b32 {sT2}, {76 * 1024}, 0
    s_cselect_b32 {sK1}, 0xff800000, 0xbf800000
    s_cselect_b32 {sFL1}, {F_Q}, {F_ACT}
    s_cselect_b32 {sT3}, 4, 5
    s_and_b32 s{bu1 + 1}, s{bu1 + 1}, 0xffff
    s_mov_b32 s{bu1 + 3}, 0x20000
    s_add_u32 {sT1}, {sT1}, {sG}
    s_lshl_b32 {sU1B}, {sT1}, 7
    s_lshl_b32 {sKS1}, {sT1}, 11
    s_add_u32 {sKS1}, {sKS1}, {sT2}
    s_lshl_b32 {sT2}, {sRB}, {sT3}
    s_add_u32 {sFL1}, {sFL1}, {sT2}
    s_add_u32 {sFL1}, {sFL1}, {sT1}
    s_lshl_b32 {sFL1}, {sFL1}, 7
    s_add_u32 {sFL1}, {sFL1}, 0x{WS_FLAGS:x}
    """)
    s += w_offsets(vWQ, 3840)
    first = xs_load(0, 0) + xs_load(1, 16384) + dma4(SWQ, vWQ, sU0B, 2 * 16384) + xs_load(2, 3 * 16384)
    XS = {0: vmops(first)[0:4], 1: vmops(first)[4:8], 2: vmops(first)[12:16]}
    WC = {(0, 0): vmops(first)[8:12]}
    s += first + stamp("e2")
    s += common_setup()
    s += w_offsets(vU1, sU1CS)
    s += L(f"""
    s_lshl_b32 {sU1CS}, {sU1CS}, 7
    s_add_u32 {sT0}, {sG}, 6
    s_lshl_b32 {sU2B}, {sT0}, 7
    s_lshl_b32 {sKS2}, {sT0}, 11
    s_lshl_b32 {sT1}, {sRB}, 5
    s_add_u32 {sT1}, {sT1}, {F_ACT}
    s_add_u32 {sFL2}, {sT1}, {sT0}
    s_lshl_b32 {sFL2}, {sFL2}, 7
    s_add_u32 {sFL2}, {sFL2}, 0x{WS_FLAGS:x}
    s_add_u32 {sFL3}, {sFL2}, {8 * 128}
    s_add_u32 {sU3B}, {sU2B}, {8 * 128}
    s_add_u32 {sKS3}, {sKS2}, {8 * 2048}
    s_lshl_b32 {sT1}, {sRB}, 4
    s_add_u32 {sT1}, {sT1}, {sG}
    s_add_u32 {sT1}, {sT1}, {F_Q}
    s_lshl_b32 {sFL0}, {sT1}, 7
    s_add_u32 {sFL0}, {sFL0}, 0x{WS_FLAGS:x}
    s_mov_b32 s{bu3}, s14
    s_and_b32 s{bu3 + 1}, s15, 0xffff
    s_cmp_lt_u32 {sG}, 5
    s_cselect_b32 s{bu3 + 2}, 2211840, 0
    s_cselect_b32 {sKS3}, {sKS3}, {sKS2}
    s_mov_b32 s{bu3 + 3}, 0x20000
    """)
    s += stamp("e3")
    s += stats_compute()
    pst = vmops(s)[-2:]
    s += stamp("e4")
    cs = colsum_compute(cdma)
    pst += vmops(cs)
    s += cs
    s += stamp(1)

    def load(kind, idx, slot):
        if kind == "X":
            c = xs_load(idx, slot * 16384)
            XS[idx] = vmops(c)
        else:
            u, ch = idx
            if u == 0:
                c = [I(f"s_add_u32 {sT0}, {sU0B}, {ch * 128 * 3840}")] + dma4(SWQ, vWQ, sT0, slot * 16384)
            elif u == 1:
                c = ([I(f"s_add_u32 {sU1B}, {sU1B}, {sU1CS}")] if ch else []) + dma4(SU1, vU1, sU1B, slot * 16384)
            else:
                c = [I(f"s_add_u32 {sT0}, {sU2B if u == 2 else sU3B}, {ch * 128 * 3456}")] + dma4(SW1 if u == 2 else SU3, vW1, sT0, slot * 16384)
            WC[idx] = vmops(c)
        SLOT[(kind, idx)] = slot
        return c
    SLOT = {("X", 0): 0, ("X", 1): 1, ("W", (0, 0)): 2, ("X", 2): 3}
    s += load("X", 3, 4) + load("W", (0, 1), 5) + load("X", 4, 6) + load("X", 5, 7)
    s += small_dmas()
    s += L(f"""
    s_add_u32 {sT0}, {sG}, 3
    s_and_b32 {sT0}, {sT0}, 7
    s_lshl_b32 {sT0}, {sT0}, 4
    s_add_u32 {sMI}, {sT0}, {sRB}
    """)
    s += prep_poll_addr("M")
    plan = {0: [None, ("W", (0, 2), 0), ("X", 6, 1)],
            1: [("X", 7, 2), ("W", (0, 3), 3), ("X", 8, 4)],
            2: [("X", 9, 5), ("W", (0, 4), 6), ("W", (1, 0), 7)],
            3: [("W", (1, 1), 0), ("W", (1, 2), 1), ("W", (1, 3), 2)],
            4: [("W", (1, 4), 3), ("W", (2, 0), 4), ("W", (2, 1), 5)]}
    rp_dma = None
    for c in range(5):
        s += stamp(f"p1_{c}a")
        s.append(WaitVM(XS[2 * c]))
        xr = x_reads(2 * c, SLOT[("X", 2 * c)])
        s += xr
        s.append(WaitVM(XS[2 * c + 1]))
        xr2 = x_reads(2 * c + 1, SLOT[("X", 2 * c + 1)])
        s += xr2
        s += [WaitVM(WC[(0, c)]), I("s_barrier")] + stamp(f"p1_{c}b")
        S = Stream()
        for k in range(8):
            for t in range(2):
                S.add(tr_unit(t, SLOT[("W", (0, c))], k), mm(ACC[t], 8 * c + k, c == 0 and k == 0))
        pro, groups = S.build()
        side = []
        if plan[c][0]:
            side += load(*plan[c][0])
        if c == 4:
            rp = repack_setup(0)
            rp_dma = vmops(rp)
        side2 = [WaitLG(xr + xr2)]
        if c == 4:
            side2 = rp + side2
        side2 += load(*plan[c][1]) + load(*plan[c][2])
        if c == 2:
            side2 += poll_issue()
        pre = []
        if c == 3:
            c1, b1 = poll_check()
            pre = c1 + b1 + aug_loads()
        s += pro
        body, rest = merge(groups, pre + side + side2, budget=28)
        s += body + rest
        if c == 0:
            s += [WaitVM(pst), I("s_barrier"), I(f"s_lshl_b32 {sT0}, s2, 7"), I(f"s_add_u32 {sT0}, {sT0}, 0x{WS_FLAGS + F_PREP * 128:x}")] + publish(sT0)
    s += stamp(2)
    S = Stream()
    idx = {}
    accs = {2: ACC[2], 3: ACC[0], 4: ACC[1], 5: ACC[2], 6: ACC[0], 7: ACC[1]}
    augw = aug_build()
    for T in range(2, 8):
        u, t = T >> 1, T & 1
        for k in range(40):
            if T == 2 and k == 16:
                idx["aug0"] = S.add(*aug_frag(vAUG, 0, ACC[0]))
                S.add(*aug_frag(vAUG, 512, ACC[1]))
            j = S.add(None, mm(accs[T], k, k == 0))
            idx[(T, k)] = j
        idx[(T, "aug")] = S.add(*aug_frag(vAUG, u * 1024 + t * 512, accs[T]))
    bar = lambda: I("s_barrier")
    S.event(idx[(2, 0)], [WaitVM(WC[(1, 0)]), bar()] + load("W", (2, 2), 6), "e2_0")
    S.event(idx[(2, 8)], [WaitVM(WC[(1, 1)]), bar()], "e2_8")
    S.event(idx["aug0"], [WaitLG(augw[-1]), WaitVM(WC[(1, 2)]), bar()], "e2_16")
    S.event(idx[(2, 24)], [WaitVM(WC[(1, 3)]), bar()], "e2_24")
    S.event(idx[(2, 32)], [WaitVM(WC[(1, 4)]), bar()], "e2_32")
    eq = epi_q(ACC[0], sKS0, 0) + epi_q(ACC[1], sKS0, 1)
    rf0, rd0, st0 = repack_finish(rp_dma, 128)
    rp1 = repack_setup(1)
    rf1, rd1, st1 = repack_finish(vmops(rp1), 144)
    S.event(idx[(3, 19)], [WaitVM(vmops(eq)), bar()] + publish(sFL0) + load("W", (2, 3), 7) + load("W", (2, 4), 0), "e3_19")
    w2fl = L(f"""
    s_lshl_b32 {sT1}, {sMI}, 7
    s_add_u32 {sT1}, {sT1}, 0x{WS_FLAGS + F_W2 * 128:x}""")
    S.event(idx[(4, 0)], [WaitVM(WC[(2, 2)]), bar()], "e4_0")
    S.event(idx[(4, 3)], [bar()] + load("W", (3, 0), 1) + load("W", (3, 1), 2) + load("W", (3, 2), 3), "e4_3")
    S.event(idx[(4, 24)], [WaitVM(WC[(2, 4)] + st1), bar()] + w2fl + publish(sT1), "e4_24")
    e2 = epi_act(accs[2], sK1, sKS1, 0)
    e3 = epi_act(accs[3], sK1, sKS1, 1)
    e4 = epi_act(accs[4], "-1.0", sKS2, 0)
    e5 = epi_act(accs[5], "-1.0", sKS2, 1)
    e6 = epi_act(accs[6], "-1.0", sKS3, 0)
    e7 = epi_act(accs[7], "-1.0", sKS3, 1)
    S.event(idx[(5, 19)], [WaitVM(vmops(e3)), bar()] + publish(sFL1) + load("W", (3, 3), 4) + load("W", (3, 4), 5), "e5_19")
    S.event(idx[(6, 0)], [WaitVM(WC[(3, 2)]), bar()], "e6_0")
    S.event(idx[(6, 24)], [WaitVM(WC[(3, 4)]), bar()], "e6_24")
    S.event(idx[(7, 20)], [WaitVM(vmops(e5)), bar()] + publish(sFL2), "e7_20")
    for T in range(2, 8):
        u, t = T >> 1, T & 1
        for k in range(40):
            S.fr[idx[(T, k)]] = (tr_unit(t, SLOT[("W", (u, k >> 3))], k & 7), S.fr[idx[(T, k)]][1])
    pro, groups = S.build()
    seg = lambda a, b: groups[a:b]
    s += pro
    a0 = idx["aug0"]
    body, rest = merge(seg(0, a0 - 3), augw + rf0)
    s += body + rest
    body, rest = merge(seg(a0 - 3, a0 + 5), [WaitLG(rd0)] + rp1)
    s += body + rest
    body, rest = merge(seg(a0 + 5, idx[(3, 0)]), eq)
    s += body + rest
    s += stamp(3)
    body, rest = merge(seg(idx[(3, 0)], idx[(4, 0)]), e2 + rf1, start=2)
    s += body + rest
    body, rest = merge(seg(idx[(4, 0)], idx[(5, 0)]), e3, start=2)
    s += body + rest
    s += stamp(4)
    wi, wc = w2_poll()
    body, rest = merge(seg(idx[(5, 0)], idx[(6, 0)] - 3), e4[:40] + wi + e4[40:], start=2)
    s += body + rest
    st = out.emit(s, st)
    stM3 = st.copy()
    out.emit([I(f"s_cmp_ge_u32 {sG}, 5"), I("s_cbranch_scc1 LtailM3")], st)
    s = []
    s += [g for grp in seg(idx[(6, 0)] - 3, idx[(6, 0)]) for g in grp]
    pf = []
    for n in range(10):
        pf.append(w2_loads(n))
    def spread(e, loads):
        o = []
        step = max(1, len(e) // (len(loads) + 1))
        li = 0
        for i, x in enumerate(e):
            o.append(x)
            if (i + 1) % step == 0 and li < len(loads):
                o.append(loads[li]); li += 1
        return o + loads[li:]
    flat = lambda l: [x for y in l for x in y]
    body, rest = merge(seg(idx[(6, 0)], idx[(7, 0)]), wc + spread(e5, flat(pf[0:5])), start=2, budget=28)
    s += body + rest
    body, rest = merge(seg(idx[(7, 0)], len(groups)), spread(e6, flat(pf[5:10])), start=2, budget=28)
    s += body + rest
    s += e7
    s += [I(f"s_mov_b32 {sFLL}, {sFL3}"), I("s_branch Ljoin")]
    st = out.emit(s, st)
    s = [Label("LtailM3"), I("s_nop 3")]
    s += [grp[0] for grp in seg(idx[(6, 0)] - 3, idx[(6, 0)])]
    wi2, wc2 = w2_poll()
    e5b = epi_act(accs[5], "-1.0", sKS2, 1)
    s += wi2 + e5b + wc2
    for n in range(10):
        s += w2_loads(n)
    s += [I(f"s_mov_b32 {sFLL}, {sFL2}"), I("s_branch Ljoin")]
    stM3 = out.emit(s, stM3)
    return [st, stM3]


def role_KV(out, st, cdma):
    s = [Label("LroleKV")]
    s += L(f"""
    s_mul_i32 {sT0}, {sG}, 160
    s_add_u32 {sT0}, {sT0}, 1280
    s_mul_i32 {sT1}, {sWV}, {16 * 3840}
    s_add_u32 {sT0}, {sT0}, {sT1}
    """)
    for n in range(5):
        s += L(f"""
        v_add_u32 v148, {64 * n}, {vLANE}
        v_mul_u32_u24 v149, 3277, v148
        v_lshrrev_b32 v149, 16, v149
        v_mul_u32_u24 v150, 20, v149
        v_sub_u32 v150, v148, v150
        v_cmp_le_u32 vcc, 10, v150
        v_lshlrev_b32 v150, 4, v150
        v_add_u32 v151, {1280 - 160}, v150
        v_cndmask_b32 v150, v150, v151, vcc
        v_mul_u32_u24 v149, 3840, v149
        v_add3_u32 {vr(vKD[n])}, v149, v150, {sT0}
        """)
        if 0 < n < 4:
            s.append(I(f"v_subrev_u32 {vr(vKD[n])}, {1024 * n}, {vr(vKD[n])}"))
    s += [I(f"s_mul_i32 {sU1B}, {sWV}, 5120")]
    XS, KS, WC = {}, {}, {}

    def xs(i):
        c = xs_load(i, (i % 4) * 16384)
        XS[i] = vmops(c)
        return c

    def ks(i):
        base = L_KR + (i % 4) * 20480
        c = [lit(sT0, i * 64 * 3840), I(f"s_add_u32 m0, {sU1B}, 0x{base:x}")]
        for n in range(4):
            c.append(I(f"buffer_load_dwordx4 {vr(vKD[n])}, {SWQ}, {sT0} offen" + (f" offset:{n * 1024}" if n else "") + " lds"))
        c += [I(f"s_add_u32 m0, {sU1B}, 0x{base + 4096:x}"), I("s_nop 0"), I(f"buffer_load_dwordx4 {vr(vKD[4])}, {SWQ}, {sT0} offen lds")]
        KS[i] = vmops(c)
        return c
    WSLOT = {0: 2, 1: 3, 2: 0, 3: 1, 4: 4}

    def wc(ch):
        c = [I(f"s_add_u32 {sT0}, {sU3B}, {ch * 128 * 3456}")] + dma4(SW1, vW1, sT0, WSLOT[ch] * 16384)
        WC[ch] = vmops(c)
        return c
    s += xs(0) + ks(0) + xs(1) + ks(1) + stamp("e2")
    s += common_setup()
    s += L(f"""
    s_add_u32 {sT0}, {sG}, 19
    s_lshl_b32 {sU3B}, {sT0}, 7
    s_lshl_b32 {sKS3}, {sT0}, 11
    s_lshl_b32 {sT1}, {sRB}, 5
    s_add_u32 {sT1}, {sT1}, {F_ACT}
    s_add_u32 {sFLL}, {sT1}, {sT0}
    s_lshl_b32 {sFLL}, {sFLL}, 7
    s_add_u32 {sFLL}, {sFLL}, 0x{WS_FLAGS:x}
    s_lshl_b32 {sT0}, {sG}, 4
    s_add_u32 {sT0}, {sT0}, {sRB}
    s_add_u32 {sT0}, {sT0}, {F_KV}
    s_lshl_b32 {sFL0}, {sT0}, 7
    s_add_u32 {sFL0}, {sFL0}, 0x{WS_FLAGS:x}
    """)
    s += L(f"""
    v_bfe_u32 v148, {vLANE}, 2, 2
    v_lshrrev_b32 v149, 5, {vLANE}
    v_lshl_add_u32 v148, v149, 3, v148
    v_mul_u32_u24 v148, 320, v148
    v_add_u32 v148, 0x{L_KR:x}, v148
    v_and_b32 v149, 3, {vLANE}
    v_lshlrev_b32 v149, 3, v149               ; 8*c
    v_bfe_u32 v150, {vLANE}, 2, 2
    v_lshlrev_b32 v150, 3, v150               ; 8*((m>>2)&3)
    v_and_b32 v151, 3, {vLANE}
    v_lshlrev_b32 v151, 4, v151
    v_add_u32 v151, 0x{L_AUG:x}, v151
    v_and_b32 v152, 16, {vLANE}
    v_cmp_eq_u32 vcc, 0, v152
    """)
    for t in range(5):
        pc = lambda mc: P[mc & 1][4 * t + (mc >> 1)]
        c0 = sum(pc(mc) << (8 * mc) for mc in range(4))
        c1 = sum(pc(4 + mc) << (8 * mc) for mc in range(4))
        s += L(f"""
        v_mov_b32 v152, 0x{c1:x}
        v_mov_b32 v153, 0x{c0:x}
        v_cndmask_b32 v152, v152, v153, vcc
        v_bfe_u32 v153, v152, v149, 8
        v_lshl_add_u32 {vr(vKT[0][t])}, v153, 3, v148
        v_add_u32 {vr(vKT[1][t])}, {2 * 20480}, {vr(vKT[0][t])}
        v_bfe_u32 v153, v152, v150, 8
        v_lshl_add_u32 {vr(vKAUG[t])}, v153, 6, v151
        """)
    s += stamp("e3")
    s += stats_compute()
    pst = vmops(s)[-2:]
    s += stamp("e4")
    cs = colsum_compute(cdma)
    pst += vmops(cs)
    s += cs
    s += stamp(1)
    s += xs(2) + ks(2) + xs(3)
    wp = L(f"""
    s_mul_i32 {sT0}, {sG}, 3200
    v_lshlrev_b32 v152, 4, v0
    s_lshl_b32 {sT1}, {sWV}, 10
    s_add_u32 m0, {sT1}, 0x{L_WPH:x}
    s_nop 0
    buffer_load_dwordx4 v152, {SPH}, {sT0} offen lds
    """)
    s += wp + small_dmas()
    small = vmops(wp) + vmops(s)[-2:]
    s += prep_poll_addr("KV")
    T = 76
    wf = L(f"""
    v_lshrrev_b32 v{T}, 5, {vLANE}            ; hk
    v_and_b32 v{T + 1}, 1, {vLANE}            ; h'
    v_bfe_u32 v{T + 2}, {vLANE}, 4, 1
    v_bfe_u32 v{T + 3}, {vLANE}, 1, 1
    v_lshl_add_u32 v{T + 2}, v{T + 2}, 1, v{T + 3}   ; q
    v_bfe_u32 v{T + 3}, {vLANE}, 2, 2
    v_mul_u32_u24 v{T + 3}, 40, v{T + 3}
    v_add_u32 v{T + 3}, 0x{L_WPH:x}, v{T + 3}  ; + r*40
    v_mov_b32 v{T + 4}, 0x{L_ZERO:x}
    """)
    PAIRS = [(0, 0), (0, 1), (0, 2), (1, 0), (1, 1), (1, 2), (1, 3), (1, 4), (2, 2), (2, 3), (2, 4)]
    for tp in range(3):
        wf += L(f"""
        v_add_u32 v{T + 5}, {4 * tp}, v{T + 2}
        v_mul_u32_u24 v{T + 6}, 52, v{T + 5}
        v_lshrrev_b32 v{T + 6}, 8, v{T + 6}          ; slot
        v_mul_u32_u24 v{T + 7}, 5, v{T + 6}
        v_sub_u32 v{T + 5}, v{T + 5}, v{T + 7}
        v_lshl_add_u32 v{T + 5}, v{T + 5}, 3, v{T + 3}
        v_xor_b32 v{T + 7}, v{T}, v{T + 1}
        v_lshl_add_u32 v{T + 6}, v{T + 7}, 2, v{T + 6}
        v_cmp_eq_u32 {sM0}, 0, v{T + 6}
        v_cmp_eq_u32 {sM1}, 1, v{T + 6}
        """)
        for fi, (tq, p) in enumerate(PAIRS):
            if tq != tp:
                continue
            for e in range(2):
                r4 = 2 * p + e
                a = [(P[h][r4] // 5) * 800 + (P[h][r4] % 5) * 160 for h in range(2)]
                m = sM0 if r4 < 5 else sM1
                wf += L(f"""
                v_mul_i32_i24 v{T + 8}, {a[1] - a[0]}, v{T}
                v_add3_u32 v{T + 8}, v{T + 8}, v{T + 5}, {sT3}
                v_cndmask_b32 v{T + 8}, v{T + 4}, v{T + 8}, {m}
                ds_read_b64_tr_b16 {ar(aWPH + 4 * fi + 2 * e, 2)}, v{T + 8}
                """)
                wf.insert(len(wf) - 4, lit(sT3, a[0]))
    augw = aug_build()
    for i in range(10):
        s += stamp(f"k1_{i}a")
        s.append(WaitVM(XS[i]))
        xr = x_reads(i, i % 4)
        s += xr
        s += [WaitVM(KS[i])]
        if i == 9:
            s += [WaitLG(augw[-1])]
        s += [I("s_barrier")] + stamp(f"k1_{i}b")
        S = Stream(pos=0)
        for k in range(4):
            for t in range(5):
                base = vKT[(i % 4) >> 1][t]
                off = ((i % 4) & 1) * 20480 + k * 5120
                S.add((lambda b, o: (lambda d: [I(f"ds_read_b64_tr_b16 v[{d}:{d + 1}], {vr(b)} offset:{o}"),
                                                I(f"ds_read_b64_tr_b16 v[{d + 2}:{d + 3}], {vr(b)} offset:{o + 1280}")]))(base, off),
                      mm(KA + 16 * t, 4 * i + k, i == 0 and k == 0))
        if i == 9:
            for t in range(5):
                S.add(*aug_frag(vKAUG[t], 0, KA + 16 * t))
        pro, groups = S.build()
        side = []
        if 1 <= i <= 6:
            side += ks(i + 3)
        if i == 9:
            side += wc(4)
        side.append(WaitLG(xr))
        side += xs(i + 4) if i + 4 <= 9 else wc(i - 6)
        if i == 3:
            side += [WaitVM(small)]
        if i == 4:
            side += wf
        if i == 5:
            side += poll_issue()
        if i == 6:
            c1, b1 = poll_check()
            side = c1 + b1 + aug_loads() + side
        if i == 8:
            side += augw
        s += pro
        body, rest = merge(groups, side, budget=24)
        s += body + rest
        if i == 0:
            s += [WaitVM(pst), I("s_barrier"), I(f"s_lshl_b32 {sT0}, s2, 7"), I(f"s_add_u32 {sT0}, {sT0}, 0x{WS_FLAGS + F_PREP * 128:x}")] + publish(sT0)
            s += ks(3)
    s += stamp(2)
    KB = 76
    VB = 96
    vEX = 120
    s += L(f"""
    s_lshl_b32 {sT0}, {sWV}, 5
    v_and_b32 v{vEX}, 31, {vLANE}
    v_add_u32 v{vEX}, {sT0}, v{vEX}
    v_mul_u32_u24 v{vEX}, 544, v{vEX}
    v_lshrrev_b32 v{vEX + 1}, 5, {vLANE}
    v_lshl_add_u32 v{vEX}, v{vEX + 1}, 7, v{vEX}
    v_add_u32 v{vEX}, 0x{L_EX:x}, v{vEX}
    v_mov_b32 v{VB + 10}, 0x3f80
    v_mov_b32 v{VB + 11}, 0
    v_mov_b32 v{VB + 22}, 0x3f80
    v_mov_b32 v{VB + 23}, 0
    s_barrier
    """)
    s += [I(f"v_cvt_pk_bf16_f32 v{KB + i}, v{KA + 2 * i}, v{KA + 2 * i + 1}") for i in range(20)]
    groups = []
    seen = set()
    for fi, (tq, p) in enumerate(PAIRS):
        c = vr(PK + 16 * tq, 16) if tq in seen else "0"
        seen.add(tq)
        groups.append([I(f"v_mfma_f32_32x32x16_bf16 {vr(PK + 16 * tq, 16)}, {ar(aWPH + 4 * fi, 4)}, {vr(KB + 4 * p, 4)}, {c}")])
    side = []
    for r4 in range(10, 20):
        a = KA + 4 * r4
        d = VB + 2 * (r4 - 10)
        off = [((P[h][r4] - 20) // 5 - h) * 128 + 80 + ((P[h][r4] - 20) % 5) * 8 for h in range(2)]
        side += [I(f"v_mul_f32 v{a + i}, v{a + i}, {vr(vRSTD)}") for i in range(4)]
        side += [I(f"v_cvt_pk_bf16_f32 v{d}, v{a}, v{a + 1}"), I(f"v_cvt_pk_bf16_f32 v{d + 1}, v{a + 2}, v{a + 3}")]
        if off[0] == off[1]:
            side.append(I(f"ds_write_b64 v{vEX}, v[{d}:{d + 1}] offset:{off[0]}"))
        else:
            side.append(I(f"v_mul_i32_i24 v{vEX + 2}, {off[1] - off[0]}, v{vEX + 1}"))
            side.append(I(f"v_add_u32 v{vEX + 2}, v{vEX + 2}, v{vEX}"))
            side.append(I(f"ds_write_b64 v{vEX + 2}, v[{d}:{d + 1}] offset:{off[0]}"))
    side += L(f"""
    ds_write_b64 v{vEX}, v[{VB + 22}:{VB + 23}] offset:120
    ds_write_b64 v{vEX}, v[{VB + 22}:{VB + 23}] offset:{256 + 120}
    """)
    body, rest = merge(groups, side, budget=24)
    s += body + rest
    for hs in range(2):
        s += softmax_pm(PK + 20 * hs, KA, KA + 20, KA + 40, True)
        for i in range(5):
            s.append(I(f"ds_write_b128 v{vEX}, v[{KA + 40 + 4 * i}:{KA + 43 + 4 * i}] offset:{hs * 256 + 16 * i}"))
    s += stamp(3)
    A0, A1 = 121, 122
    s += L(f"""
    v_lshrrev_b32 v{A0}, 5, {vLANE}
    v_bfe_u32 v{A1}, {vLANE}, 4, 1
    v_lshlrev_b32 v{A0}, 4, v{A0}
    v_lshl_add_u32 v{A0}, v{A1}, 2, v{A0}
    v_bfe_u32 v{A1}, {vLANE}, 2, 2
    v_add_u32 v{A0}, v{A0}, v{A1}
    v_mul_u32_u24 v{A0}, 544, v{A0}
    s_lshl_b32 {sT0}, {sWV}, 7
    s_add_u32 {sT0}, {sT0}, 0x{L_EX:x}
    v_add_u32 v{A0}, {sT0}, v{A0}
    v_and_b32 v{A1 + 1}, 3, {vLANE}
    v_lshl_add_u32 v{A1}, v{A1 + 1}, 3, v{A0}
    v_lshl_add_u32 v{A0}, v{A1 + 1}, 4, v{A0}
    s_waitcnt lgkmcnt(0)
    s_barrier
    """)
    FR = KA
    KVA = PK
    for stp in range(4):
        for fi, (b, o) in enumerate([(A0, 0), (A0, 8), (A1, 64), (A1, 80), (A1, 112)]):
            for e in range(2):
                d = FR + 20 * stp + 4 * fi + 2 * e
                s.append(I(f"ds_read_b64_tr_b16 v[{d}:{d + 1}], v{b} offset:{stp * 32 * 544 + e * 8 * 544 + o}"))
    s += L(f"""
    s_lshl_b32 {sT0}, {sG}, 2
    s_add_u32 {sT0}, {sT0}, {sWV}
    s_lshl_b32 {sT0}, {sT0}, 4
    s_add_u32 {sT0}, {sT0}, {sRB}
    s_lshl_b32 {sT0}, {sT0}, 11
    s_add_u32 {sT0}, {sT0}, 0x{WS_KVP:x}
    v_lshlrev_b32 v76, 4, {vLANE}
    v_lshrrev_b32 v77, 4, {vLANE}
    v_and_b32 v78, 15, {vLANE}
    v_lshl_add_u32 v77, v77, 3, v78           ; g*8 + n
    v_mov_b32 v79, 0x{OOB:x}
    v_cmp_gt_u32 vcc, 8, v78
    v_lshlrev_b32 v80, 4, v77
    v_lshlrev_b32 v81, 3, v77
    v_cndmask_b32 v80, v79, v80, vcc
    v_cndmask_b32 v81, v79, v81, vcc
    v_cmp_gt_u32 vcc, 32, {vLANE}
    v_lshlrev_b32 v82, 3, {vLANE}
    s_nop 0
    v_cndmask_b32 v81, v79, v81, vcc
    v_cndmask_b32 v82, v79, v82, vcc
    """)
    for stp in range(4):
        for td in range(2):
            for tf in range(3):
                d = KVA + 4 * (3 * td + tf)
                c = "0" if stp == 0 else vr(d, 4)
                s.append(I(f"v_mfma_f32_16x16x32_bf16 {vr(d, 4)}, {vr(FR + 20 * stp + 4 * tf, 4)}, {vr(FR + 20 * stp + 12 + 4 * td, 4)}, {c}"))
    O = 84
    for td in range(2):
        for tf in range(3):
            d = KVA + 4 * (3 * td + tf)
            o = O + 6 * td + 2 * tf
            s += [I(f"v_cvt_pk_bf16_f32 v{o}, v{d}, v{d + 1}"), I(f"v_cvt_pk_bf16_f32 v{o + 1}, v{d + 2}, v{d + 3}")]
    kst = L(f"""
    buffer_store_dwordx4 v[{O}:{O + 3}], v76, {SWS}, {sT0} offen sc1
    buffer_store_dwordx2 v[{O + 4}:{O + 5}], v82, {SWS}, {sT0} offen offset:1536 sc1
    buffer_store_dwordx4 v[{O + 6}:{O + 9}], v80, {SWS}, {sT0} offen offset:1024 sc1
    buffer_store_dwordx2 v[{O + 10}:{O + 11}], v81, {SWS}, {sT0} offen offset:1792 sc1
    """)
    s += kst
    s += stamp(4)
    S = Stream()
    idx = {}
    for t in range(2):
        for k in range(40):
            idx[(t, k)] = S.add(tr_unit(t, WSLOT[k >> 3], k & 7), mm(ACC[t], k, k == 0))
        idx[(t, "aug")] = S.add(*aug_frag(vAUG, 3 * 1024 + t * 512, ACC[t]))
    S.event(0, [WaitVM(WC[4]), I("s_barrier")])
    S.event(idx[(0, 24)], [WaitVM(kst), I("s_barrier")] + publish(sFL0), "e0_24")
    pro, groups = S.build()
    wi, wcK = w2_poll()
    s += wi + pro
    pf = []
    for n in range(10):
        pf += w2_loads(n)
    body, rest = merge(groups[:idx[(1, 0)]], wcK + pf[:36], start=6, budget=24)
    s += body + rest
    e0 = epi_act(ACC[0], "-1.0", sKS3, 0)
    e1 = epi_act(ACC[1], "-1.0", sKS3, 1)
    o = []
    rem = pf[36:]
    for i, x in enumerate(e0):
        o.append(x)
        if i % 4 == 3 and rem:
            o.append(rem.pop(0))
    o += rem
    body, rest = merge(groups[idx[(1, 0)]:], o, start=2, budget=28)
    s += body + rest
    s += e1
    st = out.emit(s, st)
    return st


def softmax_pm(p, ep, em, dst, scaled):
    T = 123
    MX, MN = 124, 126
    s = [I(f"v_max3_f32 v{MX}, v{p}, v{p + 1}, v{p + 2}"), I(f"v_min3_f32 v{MN}, v{p}, v{p + 1}, v{p + 2}")]
    for i in range(3, 19, 2):
        s += [I(f"v_max3_f32 v{MX}, v{MX}, v{p + i}, v{p + i + 1}"), I(f"v_min3_f32 v{MN}, v{MN}, v{p + i}, v{p + i + 1}")]
    s += [I(f"v_max_f32 v{MX}, v{MX}, v{p + 19}"), I(f"v_min_f32 v{MN}, v{MN}, v{p + 19}")]
    if scaled:
        s += [I(f"v_mul_f32 v{MX}, v{MX}, {vr(vC)}"), I(f"v_mul_f32 v{MN}, v{MN}, {vr(vC)}"), I(f"v_mov_b32 v{T - 1}, {vr(vC)}")]
        C = T - 1
        for i in range(0, 20, 2):
            s.append(I(f"v_pk_fma_f32 v[{em + i}:{em + i + 1}], v[{p + i}:{p + i + 1}], v[{C}:{C + 1}], v[{MN}:{MN + 1}] op_sel_hi:[1,0,0] neg_lo:[0,1,0] neg_hi:[0,1,0]"))
            s.append(I(f"v_pk_fma_f32 v[{ep + i}:{ep + i + 1}], v[{p + i}:{p + i + 1}], v[{C}:{C + 1}], v[{MX}:{MX + 1}] op_sel_hi:[1,0,0] neg_lo:[0,0,1] neg_hi:[0,0,1]"))
    else:
        for i in range(0, 20, 2):
            s.append(I(f"v_pk_add_f32 v[{em + i}:{em + i + 1}], v[{p + i}:{p + i + 1}], v[{MN}:{MN + 1}] op_sel_hi:[1,0] neg_lo:[1,0] neg_hi:[1,0]"))
            s.append(I(f"v_pk_add_f32 v[{ep + i}:{ep + i + 1}], v[{p + i}:{p + i + 1}], v[{MX}:{MX + 1}] op_sel_hi:[1,0] neg_lo:[0,1] neg_hi:[0,1]"))
    for i in range(20):
        s += [I(f"v_exp_f32 v{ep + i}, v{ep + i}"), I(f"v_exp_f32 v{em + i}, v{em + i}")]
    s += [I(f"v_pk_add_f32 v[{MX}:{MX + 1}], v[{ep}:{ep + 1}], v[{ep + 2}:{ep + 3}]"), I(f"v_pk_add_f32 v[{MN}:{MN + 1}], v[{em}:{em + 1}], v[{em + 2}:{em + 3}]")]
    for i in range(4, 20, 2):
        s += [I(f"v_pk_add_f32 v[{MX}:{MX + 1}], v[{MX}:{MX + 1}], v[{ep + i}:{ep + i + 1}]"), I(f"v_pk_add_f32 v[{MN}:{MN + 1}], v[{MN}:{MN + 1}], v[{em + i}:{em + i + 1}]")]
    s += [I(f"v_add_f32 v{MX}, v{MX}, v{MX + 1}"), I(f"v_add_f32 v{MN}, v{MN}, v{MN + 1}"),
          I(f"v_rcp_f32 v{MX}, v{MX}"), I(f"v_rcp_f32 v{MN}, v{MN}")]
    for i in range(0, 20, 2):
        s.append(I(f"v_pk_mul_f32 v[{ep + i}:{ep + i + 1}], v[{ep + i}:{ep + i + 1}], v[{MX}:{MX + 1}] op_sel_hi:[1,0]"))
        s.append(I(f"v_pk_mul_f32 v[{em + i}:{em + i + 1}], v[{em + i}:{em + i + 1}], v[{MN}:{MN + 1}] op_sel_hi:[1,0]"))
    for i in range(10):
        s.append(I(f"v_cvt_pk_bf16_f32 v{dst + i}, v{ep + 2 * i}, v{ep + 2 * i + 1}"))
    for i in range(10):
        s.append(I(f"v_cvt_pk_bf16_f32 v{dst + 10 + i}, v{em + 2 * i}, v{em + 2 * i + 1}"))
    return s


def tail(out, st, joinvm):
    s = [Label("Ljoin"), I("s_nop 7")]
    s += stamp(5)
    tNON, tFL, tWA, tWB = 252, 253, 254, 255
    s += [I(f"v_mov_b32 v{d}, v{r}") for d, r in ((tNON, vNON), (tFL, vFL), (tWA, vW2A), (tWB, vW2B))]
    vQP, vKP, vF2 = 22, 23, 24
    vROW, vA0, vA1, vT = 25, 26, 27, 28
    s += L(f"""
    s_mul_i32 {sK1}, {sHH}, 5
    s_lshr_b32 {sK1}, {sK1}, 1               ; c0
    s_lshr_b32 {sT0}, {sK1}, 3
    s_add_u32 {sT1}, {sK1}, 2
    s_lshr_b32 {sT1}, {sT1}, 3
    s_sub_u32 {sT1}, {sT1}, {sT0}
    s_lshl_b32 {sT2}, {sRC}, 5
    s_add_u32 {sT0}, {sT0}, {sT2}
    s_add_u32 {sT0}, {sT0}, {F_Q}
    v_and_b32 v{vT}, 1, {vLANE}
    v_mul_u32_u24 v{vT}, {sT1}, v{vT}
    v_bfe_u32 v{vT + 1}, {vLANE}, 1, 1
    v_lshl_add_u32 v{vT}, v{vT + 1}, 4, v{vT}
    v_add_u32 v{vT}, {sT0}, v{vT}
    v_lshlrev_b32 v{vT}, 7, v{vT}
    v_add_u32 v{vQP}, 0x{WS_FLAGS:x}, v{vT}
    """)
    s += poll_issue(vQP, vF)
    s += L(f"""
    s_lshr_b32 {sT0}, {sHH}, 2
    s_lshl_b32 {sT0}, {sT0}, 4
    s_add_u32 {sT0}, {sT0}, {F_KV}
    v_and_b32 v{vT}, 15, {vLANE}
    v_add_u32 v{vT}, {sT0}, v{vT}
    v_lshlrev_b32 v{vT}, 7, v{vT}
    v_add_u32 v{vKP}, 0x{WS_FLAGS:x}, v{vT}
    s_lshl_b32 {sT0}, {sRC}, 4
    s_lshl_b32 {sT1}, {sWV}, 2
    s_add_u32 {sT0}, {sT0}, {sT1}
    v_lshrrev_b32 v{vT}, 4, {vLANE}
    v_add_u32 v{vT}, {sT0}, v{vT}
    s_mov_b32 {sT0}, {RT}
    v_mul_lo_u32 v{vT}, v{vT}, {sT0}
    v_add_u32 v{vT}, 0x{WS_ACT:x}, v{vT}
    v_and_b32 v{vT + 1}, 15, {vLANE}
    v_lshl_add_u32 v{vROW}, v{vT + 1}, 4, v{vT}
    v_lshl_add_u32 v{vT + 3}, v{vT + 1}, 3, v{vT}
    """)
    s += L(f"""
    s_and_b32 {sT0}, {sHH}, 1
    s_mul_i32 {sT0}, {sT0}, 160
    s_sub_u32 {sT0}, 0x{L_OW + 160:x}, {sT0}
    v_bfe_u32 v{vT}, {vLANE}, 2, 2
    v_mul_u32_u24 v{vT}, 40, v{vT}
    v_bfe_u32 v{vT + 1}, {vLANE}, 4, 1
    v_bfe_u32 v{vT + 2}, {vLANE}, 1, 1
    v_lshl_add_u32 v{vT + 1}, v{vT + 1}, 1, v{vT + 2}   ; q
    v_lshl_add_u32 v{vT}, v{vT + 1}, 3, v{vT}
    v_add_u32 v{vT}, {sT0}, v{vT}
    v_lshrrev_b32 v{vT + 2}, 5, {vLANE}
    v_and_b32 v{vA1}, 1, {vLANE}
    v_xor_b32 v{vT + 2}, v{vT + 2}, v{vA1}
    v_cmp_eq_u32 vcc, 0, v{vT + 2}
    v_mov_b32 v{vA1}, 0x{L_ZERO:x}
    v_or_b32 v{vT + 2}, v{vT + 2}, v{vT + 1}
    v_cndmask_b32 v{vA0}, v{vA1}, v{vT}, vcc
    v_cmp_eq_u32 vcc, 0, v{vT + 2}
    v_add_u32 v{vT}, 32, v{vT}
    s_nop 0
    v_cndmask_b32 v{vA1}, v{vA1}, v{vT}, vcc
    """)
    for tp in range(2):
        for p in range(3):
            for e in range(2):
                s.append(I(f"ds_read_b64_tr_b16 {ar(12 * tp + 4 * p + 2 * e, 2)}, v{vA0 if tp == 0 else vA1} offset:{(8 * p + 4 * e) * 40}"))
    s += [WaitVM(joinvm), I("s_barrier")] + publish(sFLL)
    c1, b1 = poll_check(vQP, vF)
    s += c1
    s += L(f"""
    s_lshl_b32 {sT0}, {sK1}, 8
    s_add_u32 {sT0}, {sT0}, {76 * 1024}
    """)
    s += b1
    for p in range(3):
        s.append(I(f"buffer_load_dwordx4 v[{72 + 4 * p}:{75 + 4 * p}], v{vROW}, {SWS}, {sT0} offen offset:{256 * p} sc1"))
    s += poll_issue(vKP, vF2)
    for n in range(10, 14):
        s += w2_loads(n)
    vPL, vTW = 64, 65
    s += L(f"""
    s_lshl_b32 {sT0}, {sWV}, 5
    v_and_b32 v{vT}, 31, {vLANE}
    v_add_u32 v{vT}, {sT0}, v{vT}             ; ch
    v_lshrrev_b32 v{vT + 1}, 5, {vLANE}       ; hp
    v_lshlrev_b32 v{vPL}, 4, v{vT}
    v_lshl_add_u32 v{vPL}, v{vT + 1}, 14, v{vPL}
    s_lshl_b32 {sT1}, {sHH}, 15
    s_add_u32 {sT1}, {sT1}, 0x{WS_KVP:x}
    v_add_u32 v{vPL}, {sT1}, v{vPL}
    """)
    s += L(f"""
    v_and_b32 v{vT + 2}, 15, v{vT}
    v_lshrrev_b32 v66, 4, v{vT}
    v_mul_u32_u24 v{vT + 2}, 80, v{vT + 2}
    v_lshl_add_u32 v{vT + 2}, v66, 4, v{vT + 2}
    v_lshl_add_u32 v{vTW}, v{vT + 1}, 3, v{vT + 2}   ; A0 form
    v_and_b32 v{vT + 2}, 7, v{vT}
    v_bfe_u32 v66, v{vT}, 3, 2
    v_mul_u32_u24 v{vT + 2}, 80, v{vT + 2}
    v_lshl_add_u32 v{vT + 2}, v66, 4, v{vT + 2}
    v_lshl_add_u32 v{vT + 2}, v{vT + 1}, 3, v{vT + 2}
    v_add_u32 v{vT + 2}, 1280, v{vT + 2}             ; A1 form
    v_cmp_le_u32 vcc, 64, v{vT}
    v_and_b32 v66, 15, v{vT}
    v_lshl_add_u32 v66, v66, 1, v{vT + 1}            ; rho (0..31)
    v_cndmask_b32 v{vTW}, v{vTW}, v{vT + 2}, vcc
    v_and_b32 v67, 15, v66
    v_mul_u32_u24 v67, 80, v67
    v_lshrrev_b32 v68, 4, v66
    v_lshl_add_u32 v67, v68, 3, v67
    v_add_u32 v67, 64, v67                           ; B0 form
    v_cmp_le_u32 vcc, 96, v{vT}
    v_and_b32 v68, 7, v66
    v_mul_u32_u24 v68, 80, v68
    v_cndmask_b32 v{vTW}, v{vTW}, v67, vcc
    v_bfe_u32 v67, v66, 3, 1
    v_lshl_add_u32 v68, v67, 3, v68
    v_add_u32 v68, {1280 + 64}, v68                  ; B1 form
    v_cmp_le_u32 vcc, 112, v{vT}
    v_mov_b32 v67, 2560
    s_nop 0
    v_cndmask_b32 v{vTW}, v{vTW}, v68, vcc
    v_cmp_le_u32 vcc, 120, v{vT}
    s_nop 1
    v_cndmask_b32 v{vTW}, v{vTW}, v67, vcc
    """)
    s += L(f"""
    v_bfe_u32 v{vT}, {vLANE}, 3, 2
    v_and_b32 v{vT + 1}, 3, {vLANE}
    v_lshl_add_u32 v{vT}, v{vT}, 2, v{vT + 1}
    v_mul_u32_u24 v{vT}, 80, v{vT}
    v_bfe_u32 v{vT + 1}, {vLANE}, 2, 1
    v_lshrrev_b32 v{vT + 2}, 5, {vLANE}
    v_cmp_eq_u32 vcc, v{vT + 1}, v{vT + 2}
    v_mov_b32 v{vA1}, 0x{L_ZERO:x}
    v_add_u32 v{vT + 1}, 1280, v{vT}
    v_cndmask_b32 v{vA0}, v{vA1}, v{vT}, vcc
    v_cndmask_b32 v{vA1}, v{vA1}, v{vT + 1}, vcc
    """)
    for tp in range(2):
        for p in range(3):
            c = "0" if p == 0 else vr(84 + 16 * tp, 16)
            s.append(I(f"v_mfma_f32_32x32x16_bf16 {vr(84 + 16 * tp, 16)}, {ar(12 * tp + 4 * p, 4)}, {vr(72 + 4 * p, 4)}, {c}"))
    c1, b1 = poll_check(vKP, vF2)
    s += c1 + [I("s_nop 3")] + b1
    for i in range(8):
        if i % 2 == 0:
            s.append(lit(sT0, i * 2048))
        s.append(I(f"buffer_load_dwordx4 v[{32 + 4 * i}:{35 + 4 * i}], v{vPL}, {SWS}, {sT0} offen offset:{(i & 1) * 2048} sc1"))
    s += stamp(6)
    s += softmax_pm(84, 84, 104, 2, False)
    s += L(f"""
    s_mov_b32 {sT0}, 0x3f80
    s_mov_b32 {sT1}, 0x3f800000
    """)
    SM = 72
    for i in range(8):
        for r in range(4):
            for hf in range(2):
                c = "0" if i == 0 else f"v{SM + 2 * r + hf}"
                s.append(I(f"v_dot2_f32_bf16 v{SM + 2 * r + hf}, v{32 + 4 * i + r}, {sT0 if hf == 0 else sT1}, {c}"))
    for i in range(4):
        s.append(I(f"v_permlane32_swap_b32 v{SM + i}, v{SM + 4 + i}"))
    for i in range(4):
        s.append(I(f"v_add_f32 v{SM + i}, v{SM + i}, v{SM + 4 + i}"))
    s += L(f"""
    v_cvt_pk_bf16_f32 v{SM}, v{SM}, v{SM + 1}
    v_cvt_pk_bf16_f32 v{SM + 1}, v{SM + 2}, v{SM + 3}
    ds_write_b64 v{vTW}, v[{SM}:{SM + 1}]
    s_waitcnt lgkmcnt(0)
    s_barrier
    """)
    for p in range(5):
        for tp in range(2):
            s.append(I(f"ds_read_b128 {ar(24 + 20 * tp + 4 * p, 4)}, v{vA0 if tp == 0 else vA1} offset:{16 * p}"))
    vAC = [66, 67, 68, 69]
    s += L(f"""
    s_lshr_b32 {sT0}, {sR2}, 1
    s_lshl_b32 {sT0}, {sT0}, 5
    s_add_u32 {sT0}, {sT0}, {F_ACT}
    s_lshl_b32 {sT0}, {sT0}, 7
    s_add_u32 {sU0B}, {sT0}, 0x{WS_FLAGS:x}
    v_min_u32 v{vT}, 13, {vLANE}
    v_lshlrev_b32 v{vT}, 7, v{vT}
    v_add_u32 v{vQP}, {sU0B}, v{vT}
    """)
    s += poll_issue(vQP, vF2)
    for p in range(5):
        for tp in range(2):
            c = "0" if p == 0 else vr(84 + 16 * tp, 16)
            s.append(I(f"v_mfma_f32_32x32x16_bf16 {vr(84 + 16 * tp, 16)}, {ar(24 + 20 * tp + 4 * p, 4)}, {vr(2 + 4 * p, 4)}, {c}"))
    s += L(f"""
    s_lshr_b32 {sT0}, {sHH}, 1
    s_add_u32 {sT0}, {sT0}, 56
    s_lshl_b32 {sT0}, {sT0}, 10
    s_and_b32 {sT1}, {sHH}, 1
    s_lshl_b32 {sT2}, {sT1}, 9
    s_add_u32 {sT0}, {sT0}, {sT2}
    s_lshl_b32 {sT1}, {sT1}, 7
    s_lshr_b32 {sT2}, {sHH}, 1
    s_lshl_b32 {sT2}, {sT2}, 8
    s_add_u32 {sT1}, {sT1}, {sT2}
    s_add_u32 {sT1}, {sT1}, {72 * 1024}
    s_lshl_b32 {sT2}, {sRC}, 5
    s_add_u32 {sT2}, {sT2}, {sHH}
    s_add_u32 {sT2}, {sT2}, {F_O}
    s_lshl_b32 {sT2}, {sT2}, 7
    s_add_u32 {sFL0}, {sT2}, 0x{WS_FLAGS:x}
    v_add_f32 v104, 0x358637bd, v104
    v_rcp_f32 v104, v104
    v_mul_f32 v104, 0x{LOG2E:x}, v104
    """)
    for i in range(0, 20, 2):
        s.append(I(f"v_pk_mul_f32 v[{84 + i}:{85 + i}], v[{84 + i}:{85 + i}], v[104:105] op_sel_hi:[1,0]"))
    for i in range(10):
        s.append(I(f"v_cvt_pk_bf16_f32 v{2 + i}, v{84 + 2 * i}, v{85 + 2 * i}"))
    ost = L(f"""
    buffer_store_dwordx4 v[2:5], v{vROW}, {SWS}, {sT0} offen sc1
    buffer_store_dwordx4 v[6:9], v{vROW}, {SWS}, {sT0} offen offset:256 sc1
    buffer_store_dwordx2 v[10:11], v{vT + 3}, {SWS}, {sT1} offen sc1
    """)
    s += ost
    s += stamp(7)
    vAC = [12, 13, 14, 15]
    vAR = [16, 17, 18, 19]
    vXO = [25, 26, 27]
    s += L(f"""
    s_mul_i32 {sT0}, {sR2}, {4 * RT}
    s_lshl_b32 {sT1}, {sWV}, 10
    s_add_u32 {sT0}, {sT0}, {sT1}
    s_add_u32 {sT0}, {sT0}, 0x{WS_ACT:x}
    v_lshlrev_b32 v{vT}, 4, {vLANE}
    v_add_u32 v{vAC[0]}, {sT0}, v{vT}
    v_add_u32 v{vAC[1]}, {RT}, v{vAC[0]}
    v_add_u32 v{vAC[2]}, {2 * RT}, v{vAC[0]}
    v_add_u32 v{vAC[3]}, {3 * RT}, v{vAC[0]}
    """)
    c1, b1 = poll_check(vQP, vF2)
    s += c1 + [I("s_nop 3")] + b1
    ARING = [32 + 16 * i for i in range(6)]

    def act_loads(n):
        d = ARING[n % 6]
        if n < 18:
            return [lit(sT2, n * 4096)] + [I(f"buffer_load_dwordx4 v[{d + 4 * r}:{d + 4 * r + 3}], v{vAC[r]}, {SWS}, {sT2} offen sc1") for r in range(4)]
        o = []
        for r in range(4):
            o.append(I(f"buffer_load_dwordx2 v[{d + 4 * r}:{d + 4 * r + 1}], v{vAR[r]}, {SWS}, 0 offen sc1"))
            o.append(I(f"buffer_load_dwordx2 v[{d + 4 * r + 2}:{d + 4 * r + 3}], v{vAR[r]}, {SWS}, 0 offen offset:128 sc1"))
        return o
    for n in range(3):
        s += act_loads(n)
    s += [WaitVM(ost), I("s_barrier")] + publish(sFL0, tNON, tFL)
    for n in range(3, 5):
        s += act_loads(n)
    s += L(f"""
    s_add_u32 {sT0}, {sT0}, {72 * 1024}
    v_lshrrev_b32 v{vT}, 4, {vLANE}
    v_and_b32 v{vT + 1}, 15, {vLANE}
    v_lshlrev_b32 v{vT + 1}, 3, v{vT + 1}
    v_lshl_add_u32 v{vT}, v{vT}, 8, v{vT + 1}
    v_add_u32 v{vAR[0]}, {sT0}, v{vT}
    v_add_u32 v{vAR[1]}, {RT}, v{vAR[0]}
    v_add_u32 v{vAR[2]}, {2 * RT}, v{vAR[0]}
    v_add_u32 v{vAR[3]}, {3 * RT}, v{vAR[0]}
    """)
    vPB, vPC, vPD = 20, 21, 22
    s += L(f"""
    v_min_u32 v{vT}, 3, {vLANE}
    v_add_u32 v{vT}, 14, v{vT}
    v_lshlrev_b32 v{vT}, 7, v{vT}
    v_add_u32 v{vPB}, {sU0B}, v{vT}
    v_min_u32 v{vT}, 8, {vLANE}
    v_add_u32 v{vT}, 18, v{vT}
    v_lshlrev_b32 v{vT}, 7, v{vT}
    v_add_u32 v{vPC}, {sU0B}, v{vT}
    s_lshr_b32 {sT0}, {sR2}, 2
    s_lshl_b32 {sT0}, {sT0}, 5
    s_add_u32 {sT0}, {sT0}, {F_O}
    s_lshl_b32 {sT0}, {sT0}, 7
    s_add_u32 {sT0}, {sT0}, 0x{WS_FLAGS:x}
    v_and_b32 v{vT}, 31, {vLANE}
    v_lshlrev_b32 v{vT}, 7, v{vT}
    v_add_u32 v{vPD}, {sT0}, v{vT}
    """)
    vLR = [28, 29, 30]
    xo = L(f"""
    s_mul_i32 {sT0}, {sR2}, {64 * 1280}
    s_mul_i32 {sT1}, {sCG}, 160
    s_add_u32 {sT0}, {sT0}, {sT1}
    """)
    for i in range(3):
        xo += L(f"""
        v_add_u32 v2, {256 * i}, v0
        v_min_u32 v3, 639, v2
        v_mul_u32_u24 v4, 6554, v3
        v_lshrrev_b32 v4, 16, v4
        v_mul_u32_u24 v5, 10, v4
        v_sub_u32 v5, v3, v5
        v_mul_u32_u24 v6, 1280, v4
        v_lshl_add_u32 v6, v5, 4, v6
        v_add_u32 v{vXO[i]}, {sT0}, v6
        v_mul_u32_u24 v6, 336, v4
        v_lshl_add_u32 v{vLR[i]}, v5, 4, v6
        """)
        if i == 2:
            xo += L(f"""
            v_cmp_gt_u32 vcc, 640, v2
            v_mov_b32 v6, 0x{OOB:x}
            s_nop 0
            v_cndmask_b32 v{vXO[i]}, v6, v{vXO[i]}, vcc
            """)
    s += xo
    s += stamp(8)
    sides = {n: [] for n in range(19)}
    chk = {}
    def addpoll(n_issue, n_check, a):
        sides[n_issue] += poll_issue(a, vF2)
        c1, b1 = poll_check(a, vF2)
        chk[n_check] = (c1, b1)
    addpoll(0, 2, vPB)
    addpoll(3, 4, vPC)
    addpoll(11, 12, vPD)
    issue_at = {n: n - 5 for n in range(5, 14)}
    issue_at.update({14: 12, 15: 12, 16: 12, 17: 13, 18: 13})
    w2_at = {14: 1, 15: 2, 16: 3, 17: 4, 18: 5}
    for n in range(19):
        pre = []
        if n in chk:
            pre = chk[n][0] + [I("s_nop 3")] + chk[n][1]
        ld = []
        for m in range(5, 19):
            if issue_at[m] == n:
                ld += act_loads(m)
        for m in range(14, 19):
            if w2_at[m] == n:
                ld += w2_loads(m, sT3, tWA, tWB)
        if n == 14:
            ld += [I(f"buffer_load_dwordx4 v[{2 + 4 * i}:{5 + 4 * i}], v{vXO[i]}, {SX}, 0 offen") for i in range(2)]
            ld += [I(f"buffer_load_dwordx4 v[248:251], v{vXO[2]}, {SX}, 0 offen")]
        f, b = W2REG[n]
        d = ARING[n % 6]
        s += stamp(f"n{n}")
        groups = []
        for r in range(4):
            for ct in range(5):
                a = 4 * (5 * r + ct)
                c = "0" if n == 0 else ar(a, 4)
                groups.append([I(f"v_mfma_f32_16x16x32_bf16 {ar(a, 4)}, {f}[{b + 4 * ct}:{b + 4 * ct + 3}], {vr(d + 4 * r, 4)}, {c}")])
        if n == 13:
            s += pre + sides[n] + ld
            st = out.emit(s, st)
            s = []
            probe = [I(f"v_mov_b32 v31, v{d + 15}")]
            st = out.emit(probe + [I(f"s_cmp_ge_u32 {sWV}, 2"), I("s_cbranch_scc1 Lskip13")], st)
            st = out.emit([g[0] for g in groups], st)
            st = out.emit([Label("Lskip13"), I("s_nop 1")], st)
            continue
        s += pre
        body, rest = merge(groups, sides[n] + ld, budget=8, start=1)
        s += body + rest
    s += stamp(9)
    WSZ = 64 * 336
    s += L(f"""
    v_and_b32 v12, 15, {vLANE}
    v_mul_u32_u24 v12, 336, v12
    v_lshrrev_b32 v13, 5, {vLANE}
    v_lshl_add_u32 v12, v13, 4, v12
    v_bfe_u32 v13, {vLANE}, 4, 1
    v_mul_u32_u24 v13, 160, v13
    s_mul_i32 {sT0}, {sWV}, {WSZ}
    v_add3_u32 v12, v12, v13, {sT0}
    """)
    for r in range(4):
        for ct in range(5):
            a = 4 * (5 * r + ct)
            s.append(I(f"ds_write_b128 v12, {ar(a, 4)} offset:{r * 16 * 336 + ct * 32}"))
    s += L("""
    s_waitcnt lgkmcnt(0)
    s_barrier
    """)
    for i in range(3):
        for w in range(4):
            for hf in range(2):
                d = 32 + 32 * i + 8 * w + 4 * hf
                off = w * WSZ + hf * 160
                if off < 65536:
                    s.append(I(f"ds_read_b128 v[{d}:{d + 3}], v{vLR[i]} offset:{off}"))
                else:
                    raise ValueError
    s += [lit(sT0, LN2)]
    XR = [2, 6, 248]
    for i in range(3):
        b = 32 + 32 * i
        for j in range(0, 8, 2):
            s.append(I(f"v_pk_add_f32 v[{b + j}:{b + j + 1}], v[{b + j}:{b + j + 1}], v[{b + 8 + j}:{b + 9 + j}]"))
            s.append(I(f"v_pk_add_f32 v[{b + 16 + j}:{b + 17 + j}], v[{b + 16 + j}:{b + 17 + j}], v[{b + 24 + j}:{b + 25 + j}]"))
        for j in range(0, 8, 2):
            s.append(I(f"v_pk_add_f32 v[{b + j}:{b + j + 1}], v[{b + j}:{b + j + 1}], v[{b + 16 + j}:{b + 17 + j}]"))
        for j in range(4):
            s.append(I(f"v_lshlrev_b32 v{b + 8 + 2 * j}, 16, v{XR[i] + j}"))
            s.append(I(f"v_and_b32 v{b + 9 + 2 * j}, 0xffff0000, v{XR[i] + j}"))
        for j in range(8):
            s.append(I(f"v_fma_f32 v{b + j}, v{b + j}, {sT0}, v{b + 8 + j}"))
        for j in range(4):
            s.append(I(f"v_cvt_pk_bf16_f32 v{b + 16 + j}, v{b + 2 * j}, v{b + 2 * j + 1}"))
        s.append(I(f"buffer_store_dwordx4 v[{b + 16}:{b + 19}], v{vXO[i]}, {SOUT}, 0 offen"))
    s += stamp(10)
    if OPT["stamps"]:
        s += L(f"""
        s_waitcnt vmcnt(0)
        """) + stamp("end") + L(f"""
        s_lshl_b32 {sT0}, s2, 8
        s_lshl_b32 {sT1}, {sWV}, 6
        s_add_u32 {sT0}, {sT0}, {sT1}
        s_add_u32 {sT0}, {sT0}, 0x{WS_DBG:x}
        v_cmp_eq_u32 vcc, 0, {vLANE}
        v_mov_b32 v3, 0x{OOB:x}
        v_mov_b32 v2, 0
        v_cndmask_b32 v2, v3, v2, vcc
        buffer_store_dwordx4 a[240:243], v2, {SWS}, {sT0} offen
        buffer_store_dwordx4 a[244:247], v2, {SWS}, {sT0} offen offset:16
        buffer_store_dwordx4 a[248:251], v2, {SWS}, {sT0} offen offset:32
        buffer_store_dwordx4 a[252:255], v2, {SWS}, {sT0} offen offset:48
        """)
    if OPT["probe"] >= 0:
        s += L(f"""
        s_cmp_lg_u32 s2, {OPT['probewg']}
        s_cbranch_scc1 Lnoprobe
        v_accvgpr_read_b32 v2, a{240 + OPT['probe']}
        v_accvgpr_read_b32 v3, a240
        v_accvgpr_read_b32 v4, a253
        v_sub_u32 v2, v2, v3
        v_min_u32 v2, 5000, v2
        v_lshl_add_u32 v2, v2, 2, v4
        v_readfirstlane_b32 {sT0}, v2
        """)
        s += [Raw(f"""Lprobe:
    s_memrealtime s[100:101]
    s_waitcnt lgkmcnt(0)
    s_sub_u32 s100, s100, {sT0}
    s_cmp_lt_i32 s100, 0
    s_cbranch_scc1 Lprobe"""), Label("Lnoprobe")]
    s += L(f"""
    s_cmp_lg_u32 s2, 0
    s_cbranch_scc1 Lend
    v_lshlrev_b32 v2, 7, v0
    v_add_u32 v2, 0x{WS_FLAGS + F_PREP * 128:x}, v2
    """)
    s += poll_issue(2, 3)
    c1, b1 = poll_check(2, 3)
    s += c1 + b1
    s += L(f"""
    v_cmp_eq_u32 vcc, 0, v0
    v_mov_b32 v2, 0x{OOB:x}
    v_mov_b32 v3, {sNON}
    s_barrier
    v_cndmask_b32 v2, v2, 0, vcc
    buffer_store_dword v3, v2, {SWS}, 0 offen sc1
    """)
    s += [Label("Lend"), I("s_endpgm")]
    st = out.emit(s, st)
    return st


def main():
    out = Out()
    st = State()
    e, cdma = entry()
    e += [I(f"s_cmp_ge_u32 {sY}, 16"), I("s_cbranch_scc1 LroleM")]
    st = out.emit(e, st)
    stM = st.copy()
    stK = role_KV(out, st, cdma)
    out.emit([I("s_branch Ljoin")], stK)
    sts = role_M(out, stM, cdma)
    j, pv = join_states([stK] + sts)
    tail(out, j, pv)
    hdr = open(os.path.join(os.path.dirname(os.path.abspath(__file__)), "..", "cdna_kernels", NAME + ".s.ref")).read().split("\n")
    head = [l for l in hdr if l.startswith(";") and "@launch" not in l]
    txt = "\n".join(head) + f"\n; @launch grid=(256,1,1) block=(256,1,1) lds={LDS_SIZE}\n"
    if OPT["stamps"]:
        txt += "; marks " + ",".join(MARKS) + "\n"
    txt += f""".amdgcn_target "amdgcn-amd-amdhsa--gfx950"
.text
.globl {NAME}_kernel
.p2align 8
.type {NAME}_kernel,@function
{NAME}_kernel:
"""
    txt += out.text()
    txt += "\n".join(slow_paths) + "\n"
    txt += f""".section .rodata,"a"
.p2align 6
.amdhsa_kernel {NAME}_kernel
  .amdhsa_next_free_vgpr 512
  .amdhsa_next_free_sgpr 102
  .amdhsa_accum_offset 256
  .amdhsa_group_segment_fixed_size 0
  .amdhsa_kernarg_size 88
  .amdhsa_user_sgpr_count 2
  .amdhsa_user_sgpr_kernarg_segment_ptr 1
  .amdhsa_system_sgpr_workgroup_id_x 1
.end_amdhsa_kernel
"""
    dst = sys.argv[1] if len(sys.argv) > 1 else "cdna_kernels/" + NAME + ".s"
    open(dst, "w").write(txt)
    print(f"wrote {dst}: {out.count} instrs, {out.nops} nops, {out.waits} waits")


main()
```
